```python
import torch

def _softmax(x, axis=-1):
    return torch.softmax(x, dim=axis)
def _gelu(x):
    return torch.nn.functional.gelu(x, approximate="tanh")
def _silu(x):
    return torch.nn.functional.silu(x)
def _sigmoid(x):
    return torch.sigmoid(x)
def _layernorm(x, axis=-1, eps=1e-5):
    m = x.mean(dim=axis, keepdim=True)
    v = x.var(dim=axis, keepdim=True, unbiased=False)
    return (x - m) / torch.sqrt(v + eps)
def _scatter_add(tgt, idx, src, axis=0):
    return tgt.clone().index_add_(axis, idx, src)
def _segment_sum(src, seg, n):
    out = torch.zeros((n,) + src.shape[1:], dtype=src.dtype)
    return out.index_add_(0, seg, src)
def _pad(x, pw):
    flat = tuple(v for pair in reversed(pw) for v in pair)
    return torch.nn.functional.pad(x, flat)

kernel_name = 'sequential_preLN__sliding_local_dilated__mixer_channel_mlp__prompt'

def setup_inputs():

    _w = (lambda a: (lambda t: t.to(torch.bfloat16) if t.is_floating_point() else t)(torch.as_tensor(a)))
    def _A_setup():
        B, S, D = 1, 2048, 512
        return {
            "x": _w((lambda *s: torch.randn(*s, dtype=torch.bfloat16) * 0.05)(B, S, D)),
            "wqkv": _w((lambda *s: torch.randn(*s, dtype=torch.bfloat16) * 0.05)(D, 3 * D)),
            "wo": _w((lambda *s: torch.randn(*s, dtype=torch.bfloat16) * 0.05)(D, D)),
        }
    _A_in = _A_setup()

    def _B_setup():
        B, S, D, F = 1, 2048, 512, 1792
        return {
            "x": _w((lambda *s: torch.randn(*s, dtype=torch.bfloat16) * 0.05)(B, S, D)),
            "w1": _w((lambda *s: torch.randn(*s, dtype=torch.bfloat16) * 3.2)(D, F) * (D ** -0.5)),
            "b1": _w((lambda *s: torch.randn(*s, dtype=torch.bfloat16) * 1.6)(F)),
            "w2": _w((lambda *s: torch.randn(*s, dtype=torch.bfloat16) * 0.2)(F, D) * (F ** -0.5)),
            "b2": _w((lambda *s: torch.randn(*s, dtype=torch.bfloat16) * 0.2)(D)),
        }
    _B_in = _B_setup()

    return {
        "A_x": _A_in["x"],
        "A_wqkv": _A_in["wqkv"],
        "A_wo": _A_in["wo"],
        "B_x": _B_in["x"],
        "B_w1": _B_in["w1"],
        "B_b1": _B_in["b1"],
        "B_w2": _B_in["w2"],
        "B_b2": _B_in["b2"],
    }

def reference(A_x, A_wqkv, A_wo, B_x, B_w1, B_b1, B_w2, B_b2):
    def _A_ref(x, wqkv, wo):
        B, S, D = x.shape
        H = 32; Dh = D // H
        W, dil = 8, 2
        qkv = (lambda x, *d: x.permute(*d))((x @ wqkv).reshape(B, S, 3, H, Dh), 2, 0, 3, 1, 4)
        q, k, v = qkv[0], qkv[1], qkv[2]
        scale = Dh ** -0.5
        pos = torch.arange(S)
        off = torch.arange(W) * dil
        idx = pos[:, None] - off[None, :]
        mask = idx >= 0
        idx_c = torch.where(mask, idx, 0).reshape(-1)
        kg = k[:, :, idx_c, :].reshape(B, H, S, W, Dh)
        vg = v[:, :, idx_c, :].reshape(B, H, S, W, Dh)
        logits = torch.einsum("bhsd,bhswd->bhsw", q, kg) * scale
        logits = torch.where(mask[None, None, :, :], logits, -1e9)
        attn = _softmax(logits, axis=-1)
        o = torch.einsum("bhsw,bhswd->bhsd", attn, vg)
        return (lambda x, *d: x.permute(*d))(o, 0, 2, 1, 3).reshape(B, S, D) @ wo

    def _B_ref(x, w1, b1, w2, b2):
        y = _layernorm(x, axis=-1)
        h = _gelu(torch.einsum("bsd,df->bsf", y, w1) + b1)
        return torch.einsum("bsf,fd->bsd", h, w2) + b2

    x = A_x
    h = x + _A_ref(_layernorm(x, axis=-1), A_wqkv, A_wo)
    h2 = h + _B_ref(_layernorm(h, axis=-1), B_w1, B_b1, B_w2, B_b2)
    return h2
```

```python
import sys

NAME = "sequential_preLN__sliding_local_dilated__mixer_channel_mlp__prompt"
OUT = "cdna_kernels/%s.s" % NAME

WS_O = 0
WS_H = 2 * 1024 * 1024
WS_HID = 4 * 1024 * 1024
WS_BYTES = 268435456

LOG2E = 1.4426950408889634


def f32hex(x):
    import struct
    return "0x%08x" % struct.unpack("<I", struct.pack("<f", x))[0]


class Asm:
    def __init__(self):
        self.lines = []

    def __call__(self, s):
        self.lines.append("    " + s)

    def label(self, s):
        self.lines.append(s + ":")

    def raw(self, s):
        self.lines.append(s)

    def text(self):
        return "\n".join(self.lines) + "\n"


def srd(a, d, ptr, nbytes):
    a("s_mov_b32 s%d, s%d" % (d, ptr))
    a("s_and_b32 s%d, s%d, 0xffff" % (d + 1, ptr + 1))
    a("s_mov_b32 s%d, %d" % (d + 2, nbytes))
    a("s_mov_b32 s%d, 0x00020000" % (d + 3))


def srd_off(a, d, ptr, off, nbytes):
    a("s_add_u32 s%d, s%d, %d" % (d, ptr, off))
    a("s_addc_u32 s%d, s%d, 0" % (d + 1, ptr + 1))
    a("s_and_b32 s%d, s%d, 0xffff" % (d + 1, d + 1))
    a("s_mov_b32 s%d, %d" % (d + 2, nbytes))
    a("s_mov_b32 s%d, 0x00020000" % (d + 3))


def kernel_head(a, name):
    a.raw(".globl %s" % name)
    a.raw(".p2align 8")
    a.raw(".type %s,@function" % name)
    a.label(name)


def kernel_desc(name, nvgpr, accum, nsgpr=96):
    return """.amdhsa_kernel %s
  .amdhsa_next_free_vgpr %d
  .amdhsa_next_free_sgpr %d
  .amdhsa_accum_offset %d
  .amdhsa_group_segment_fixed_size 0
  .amdhsa_kernarg_size 88
  .amdhsa_user_sgpr_count 2
  .amdhsa_user_sgpr_kernarg_segment_ptr 1
  .amdhsa_system_sgpr_workgroup_id_x 1
.end_amdhsa_kernel
""" % (name, nvgpr, nsgpr, accum)


def vr(b, n=4):
    return "v[%d:%d]" % (b, b + n - 1)


def ar(b, n=4):
    return "a[%d:%d]" % (b, b + n - 1)


def common_prologue(a, nwg, done):
    a("s_cmp_ge_u32 s2, %d" % nwg)
    a("s_cbranch_scc1 %s" % done)
    a("s_load_dwordx16 s[64:79], s[0:1], 0")
    a("s_load_dwordx4 s[80:83], s[0:1], 64")
    a("s_load_dwordx2 s[84:85], s[0:1], 80")
    a("v_and_b32 v1, 63, v0")
    a("v_lshrrev_b32 v4, 6, v0")
    a("v_and_b32 v2, 15, v0")
    a("v_bfe_u32 v3, v0, 4, 2")
    a("v_readfirstlane_b32 s26, v4")
    a("s_waitcnt lgkmcnt(0)")


P_X, P_WQKV, P_WO, P_W1, P_B1, P_W2, P_B2, P_OUT, P_WS = 64, 66, 68, 72, 74, 76, 78, 80, 84


def reduce_groups(a, regs, tmp, addr16, addr32):
    for addr in (addr16, addr32):
        for i, r in enumerate(regs):
            a("ds_bpermute_b32 v%d, v%d, v%d" % (tmp + i, addr, r))
        a("s_waitcnt lgkmcnt(0)")
        for i, r in enumerate(regs):
            a("v_add_f32 v%d, v%d, v%d" % (r, r, tmp + i))


def row_stats(a, frag_base, nregs, s_reg, q_reg, ones):
    a("v_mov_b32 v%d, 0" % s_reg)
    a("v_mov_b32 v%d, 0" % q_reg)
    for i in range(nregs):
        a("v_dot2_f32_bf16 v%d, v%d, v%d, v%d" % (s_reg, frag_base + i, ones, s_reg))
        a("v_dot2_f32_bf16 v%d, v%d, v%d, v%d" % (q_reg, frag_base + i, frag_base + i, q_reg))


def gen_k1(a):
    name = "k1_qkv_attn_kernel"
    kernel_head(a, name)
    done = "L_k1_done"
    common_prologue(a, 256, done)
    a("s_lshr_b32 s24, s2, 4")
    a("s_and_b32 s25, s2, 15")
    srd(a, 12, P_X, 2048 * 512 * 2)
    srd(a, 16, P_WQKV, 512 * 1536 * 2)
    srd_off(a, 20, P_WS, WS_O, 2048 * 512 * 2)
    a("s_lshl_b32 s27, s24, 7")
    a("s_lshl_b32 s28, s26, 5")
    a("s_add_u32 s28, s28, s27")
    a("v_add_u32 v5, s28, v2")
    a("v_lshlrev_b32 v5, 10, v5")
    a("v_lshl_add_u32 v5, v3, 4, v5")
    a("v_add_u32 v6, 0x4000, v5")
    a("s_sub_u32 s29, s27, 16")
    a("v_add_u32 v7, s29, v2")
    a("v_lshlrev_b32 v7, 10, v7")
    a("v_lshl_add_u32 v7, v3, 4, v7")
    for ks in range(16):
        a("buffer_load_dwordx4 %s, v5, s[12:15], 0 offen offset:%d" % (vr(64 + 4 * ks), ks * 64))
    for ks in range(16):
        a("buffer_load_dwordx4 %s, v6, s[12:15], 0 offen offset:%d" % (vr(128 + 4 * ks), ks * 64))
    for ks in range(16):
        a("buffer_load_dwordx4 %s, v7, s[12:15], 0 offen offset:%d" % (vr(192 + 4 * ks), ks * 64))
    a("s_lshl_b32 s30, s25, 6")
    for q in range(3):
        d = 8 + q
        a("v_add_u32 v11, %d, v1" % (q * 64))
        a("v_mul_u32_u24 v12, 171, v11")
        a("v_lshrrev_b32 v12, 11, v12")
        a("v_mul_u32_u24 v13, 12, v12")
        a("v_sub_u32 v13, v11, v13")
        a("v_lshrrev_b32 v14, 1, v13")
        a("v_and_b32 v15, 1, v13")
        a("v_bfe_u32 v16, v12, 3, 1")
        a("v_sub_u32 v14, v14, v16")
        a("v_add_u32 v16, 6, v14")
        a("v_cmp_gt_i32 vcc, 0, v14")
        a("s_nop 1")
        a("v_cndmask_b32 v14, v14, v16, vcc")
        a("v_lshrrev_b32 v16, 1, v14")
        a("v_and_b32 v14, 1, v14")
        a("v_lshlrev_b32 v14, 5, v14")
        a("v_lshl_add_u32 v14, v15, 4, v14")
        a("v_lshl_add_u32 v14, v16, 10, v14")
        a("v_mul_u32_u24 v12, 3072, v12")
        a("v_add3_u32 v%d, v12, v14, s30" % d)
    a("s_mul_i32 s31, s26, 24576")
    a("s_mul_i32 s32, s26, %d" % (8 * 49152))
    for t in range(24):
        a("s_add_u32 m0, s31, %d" % (t * 1024))
        a("s_add_u32 s33, s32, %d" % ((t // 3) * 49152))
        a("buffer_load_dwordx4 v%d, s[16:19], s33 offen lds" % (8 + t % 3))
    a("v_lshrrev_b32 v14, 2, v2")
    a("v_and_b32 v15, 3, v2")
    a("v_lshl_add_u32 v14, v3, 3, v14")
    a("v_mul_u32_u24 v14, 192, v14")
    a("v_lshl_add_u32 v14, v15, 3, v14")
    a("v_and_b32 v15, 1, v3")
    a("v_lshl_add_u32 v12, v15, 5, v14")
    a("v_mul_u32_u24 v15, 160, v15")
    a("v_sub_u32 v13, 160, v15")
    a("v_add_u32 v13, v13, v14")
    a("v_add_u32 v16, 49152, v12")
    a("v_add_u32 v17, 49152, v13")
    a("v_xor_b32 v18, 16, v1")
    a("v_lshlrev_b32 v18, 2, v18")
    a("v_xor_b32 v19, 32, v1")
    a("v_lshlrev_b32 v19, 2, v19")
    a("v_mov_b32 v20, 0x3f803f80")
    for i in range(56):
        a("v_accvgpr_write_b32 a%d, 0" % i)
    a("s_waitcnt vmcnt(0)")
    a("s_barrier")
    row_stats(a, 64, 64, 22, 23, 20)
    row_stats(a, 128, 64, 24, 25, 20)
    row_stats(a, 192, 64, 26, 27, 20)
    reduce_groups(a, [22, 23, 24, 25, 26, 27], 28, 18, 19)
    a("v_mov_b32 v34, %s" % f32hex(1.0 / 512))
    a("v_mov_b32 v35, %s" % f32hex(1e-5))
    for t in range(3):
        s_, q_ = 22 + 2 * t, 23 + 2 * t
        a("v_mul_f32 v%d, v%d, v34" % (s_, s_))
        a("v_mul_f32 v%d, v%d, v34" % (q_, q_))
        a("v_fma_f32 v%d, -v%d, v%d, v%d" % (q_, s_, s_, q_))
        a("v_max_f32 v%d, 0, v%d" % (q_, q_))
        a("v_add_f32 v%d, v%d, v35" % (q_, q_))
        a("v_rsq_f32 v%d, v%d" % (q_, q_))
        a("s_nop 0")
        a("v_mul_f32 v%d, v%d, v%d" % (s_, s_, q_))
    a("v_cmp_eq_u32 vcc, 0, v2")
    a("s_and_saveexec_b64 s[34:35], vcc")
    for i in range(64):
        a("v_mov_b32 v%d, v20" % (192 + i))
    a("s_mov_b64 exec, s[34:35]")
    a("s_nop 4")

    WB = [64, 96]

    def tr_reads(ks, buf):
        base01 = 12 if ks < 8 else 16
        base5 = 13 if ks < 8 else 17
        kk = ks % 8
        for jp in range(6):
            for h in range(2):
                off = kk * 6144 + h * 768 + (jp * 32 if jp < 5 else 0)
                b = base01 if jp < 5 else base5
                a("ds_read_b64_tr_b16 %s, v%d offset:%d" % (ar(WB[buf] + jp * 4 + h * 2, 2), b, off))

    def mainloop(extra):
        tr_reads(0, 0)
        for ks in range(16):
            a("s_waitcnt lgkmcnt(0)")
            if ks + 1 < 16:
                tr_reads(ks + 1, (ks + 1) & 1)
            wb = WB[ks & 1]
            for jp in range(6):
                a("v_mfma_f32_16x16x32_bf16 %s, %s, %s, %s" % (ar(jp * 4), ar(wb + jp * 4), vr(64 + 4 * ks), ar(jp * 4)))
                a("v_mfma_f32_16x16x32_bf16 %s, %s, %s, %s" % (ar(24 + jp * 4), ar(wb + jp * 4), vr(128 + 4 * ks), ar(24 + jp * 4)))
            for (accb, jp) in extra:
                a("v_mfma_f32_16x16x32_bf16 %s, %s, %s, %s" % (ar(accb), ar(wb + jp * 4), vr(192 + 4 * ks), ar(accb)))

    for w in range(4):
        if w < 3:
            a("s_cmp_lg_u32 s26, %d" % w)
            a("s_cbranch_scc1 L_k1_w%d_next" % w)
        extra = [(48, 2 + w)]
        if w < 2:
            extra.append((52, w))
        mainloop(extra)
        if w < 3:
            a("s_branch L_k1_loop_done")
            a.label("L_k1_w%d_next" % w)
    a.label("L_k1_loop_done")
    a("s_nop 7")
    a("s_nop 7")
    CS = 98304
    a("v_lshlrev_b32 v36, 4, v3")
    a("v_add_u32 v39, %d, v36" % CS)
    a("s_add_u32 s36, s26, 2")
    a("s_lshl_b32 s36, s36, 6")
    a("v_add_u32 v37, s36, v39")
    a("s_lshl_b32 s37, s26, 6")
    a("v_add_u32 v38, s37, v39")
    a("v_cmp_eq_u32 vcc, 0, v2")
    a("s_and_saveexec_b64 s[34:35], vcc")
    a("ds_write_b128 v37, %s" % (ar(48)))
    a("s_cmp_lt_u32 s26, 2")
    a("s_cbranch_scc0 L_k1_nocs2")
    a("ds_write_b128 v38, %s" % (ar(52)))
    a.label("L_k1_nocs2")
    a("s_mov_b64 exec, s[34:35]")
    a("s_waitcnt lgkmcnt(0)")
    a("s_barrier")
    for jp in range(6):
        a("ds_read_b128 %s, v39 offset:%d" % (vr(40 + jp * 4), jp * 64))
    QB, KB, VB = 0, 128 * 144, 128 * 144 + 144 * 144
    a("s_lshl_b32 s36, s26, 5")
    a("v_add_u32 v37, s36, v2")
    a("v_mul_u32_u24 v37, 144, v37")
    a("v_add_u32 v37, v37, v36")
    a("v_mul_u32_u24 v38, 144, v2")
    a("v_add_u32 v38, v38, v36")
    a("s_waitcnt lgkmcnt(0)")

    def fix_write(accb, jp, stat, addr, off):
        m_, r_ = stat, stat + 1
        for r in range(4):
            a("v_accvgpr_read_b32 v%d, a%d" % (64 + r, accb + r))
        for r in range(4):
            a("v_mul_f32 v%d, v%d, v%d" % (68 + r, m_, 40 + jp * 4 + r))
        for r in range(4):
            a("v_fma_f32 v%d, v%d, v%d, -v%d" % (64 + r, 64 + r, r_, 68 + r))
        a("ds_write_b128 v%d, %s offset:%d" % (addr, vr(64), off))
        a("s_nop 1")

    for t in range(2):
        for jp in range(6):
            sec = jp >> 1
            regbase = [QB, KB + 16 * 144, VB + 16 * 144][sec]
            fix_write(t * 24 + jp * 4, jp, 22 + 2 * t, 37, regbase + t * 16 * 144 + (jp & 1) * 64)
    for w in range(4):
        if w < 3:
            a("s_cmp_lg_u32 s26, %d" % w)
            a("s_cbranch_scc1 L_k1_h%d_next" % w)
        jp = 2 + w
        regbase = [QB, KB, VB][jp >> 1]
        fix_write(48, jp, 26, 38, regbase + (jp & 1) * 64)
        if w < 3:
            a("s_branch L_k1_h_done")
            a.label("L_k1_h%d_next" % w)
    a.label("L_k1_h_done")
    a("s_waitcnt lgkmcnt(0)")
    a("s_barrier")
    a("v_and_b32 v4, 127, v0")
    a("v_lshrrev_b32 v5, 7, v0")
    a("v_mul_u32_u24 v6, 144, v4")
    a("v_lshl_add_u32 v6, v5, 6, v6")
    for i in range(4):
        a("ds_read_b128 %s, v6 offset:%d" % (vr(8 + 4 * i), QB + 16 * i))
    for w in range(8):
        for i in range(4):
            a("ds_read_b128 %s, v6 offset:%d" % (vr(64 + 16 * w + 4 * i), KB + 16 * 144 - 288 * w + 16 * i))
        if w % 2 == 1:
            a("s_waitcnt lgkmcnt(0)")
    a("v_mov_b32 v7, %s" % f32hex(0.25 * LOG2E))
    for i in range(16):
        a("v_mul_f32 v%d, v%d, v7" % (8 + i, 8 + i))
    for w in range(8):
        a("v_mul_f32 v%d, v8, v%d" % (24 + w, 64 + 16 * w))
        for i in range(1, 16):
            a("v_fmac_f32 v%d, v%d, v%d" % (24 + w, 8 + i, 64 + 16 * w + i))
    for w in range(8):
        for i in range(4):
            a("ds_read_b128 %s, v6 offset:%d" % (vr(64 + 16 * w + 4 * i), VB + 16 * 144 - 288 * w + 16 * i))
        if w % 2 == 1 and w < 7:
            a("s_waitcnt lgkmcnt(0)")
    a("v_add_u32 v32, s27, v4")
    a("v_mov_b32 v33, %s" % f32hex(-1e30))
    for w in range(1, 8):
        a("v_cmp_le_u32 vcc, %d, v32" % (2 * w))
        a("s_nop 1")
        a("v_cndmask_b32 v%d, v33, v%d, vcc" % (24 + w, 24 + w))
    a("v_max3_f32 v34, v24, v25, v26")
    a("v_max3_f32 v34, v34, v27, v28")
    a("v_max3_f32 v34, v34, v29, v30")
    a("v_max_f32 v34, v34, v31")
    for w in range(8):
        a("v_sub_f32 v%d, v%d, v34" % (24 + w, 24 + w))
    for w in range(8):
        a("v_exp_f32 v%d, v%d" % (24 + w, 24 + w))
    a("s_nop 0")
    a("v_add_f32 v35, v24, v25")
    for w in range(2, 8):
        a("v_add_f32 v35, v35, v%d" % (24 + w))
    a("v_rcp_f32 v35, v35")
    a("s_nop 0")
    for w in range(8):
        a("v_mul_f32 v%d, v%d, v35" % (24 + w, 24 + w))
    a("s_waitcnt lgkmcnt(0)")
    for i in range(16):
        a("v_mul_f32 v%d, v24, v%d" % (40 + i, 64 + i))
    for w in range(1, 8):
        for i in range(16):
            a("v_fmac_f32 v%d, v%d, v%d" % (40 + i, 24 + w, 64 + 16 * w + i))
    for i in range(8):
        a("v_cvt_pk_bf16_f32 v%d, v%d, v%d" % (56 + i, 40 + 2 * i, 41 + 2 * i))
    a("v_lshlrev_b32 v32, 10, v32")
    a("v_lshl_add_u32 v32, v5, 5, v32")
    a("v_add_u32 v32, s30, v32")
    a("buffer_store_dwordx4 %s, v32, s[20:23], 0 offen" % vr(56))
    a("buffer_store_dwordx4 %s, v32, s[20:23], 0 offen offset:16" % vr(60))
    a.label(done)
    a("s_endpgm")
    return name, 256 + 120, 256, 98304 + 512


def gen_k24(a, which):
    if which == 2:
        name = "k2_wo_kernel"
        K = 512
        nchunk = 1
    else:
        name = "k4_w2_kernel"
        K = 1792
        nchunk = 4
    KC = K // nchunk
    KS = KC // 32
    CHB = KC * 128
    kernel_head(a, name)
    done = "L_%s_done" % name
    common_prologue(a, 256, done)
    a("s_lshr_b32 s24, s2, 3")
    a("s_and_b32 s25, s2, 7")
    if which == 2:
        srd_off(a, 12, P_WS, WS_O, 2048 * 512 * 2)
        srd(a, 16, P_WO, 512 * 512 * 2)
        srd(a, 20, P_X, 2048 * 512 * 2)
        srd_off(a, 40, P_WS, WS_H, 2048 * 512 * 2)
    else:
        srd_off(a, 12, P_WS, WS_HID, 2048 * 1792 * 2)
        srd(a, 16, P_W2, 1792 * 512 * 2)
        srd_off(a, 20, P_WS, WS_H, 2048 * 512 * 2)
        srd(a, 40, P_OUT, 2048 * 512 * 2)
        srd(a, 44, P_B2, 512 * 2)
    RS = K * 2
    a("s_lshr_b32 s27, s26, 1")
    a("s_and_b32 s28, s26, 1")
    a("s_lshl_b32 s29, s24, 6")
    a("s_lshl_b32 s30, s27, 5")
    a("s_add_u32 s29, s29, s30")
    a("v_add_u32 v5, s29, v2")
    a("s_mov_b32 s31, %d" % RS)
    a("v_mul_lo_u32 v6, v5, s31")
    a("v_lshl_add_u32 v6, v3, 4, v6")
    a("v_add_u32 v7, %d, v6" % (16 * RS))
    a("s_lshl_b32 s30, s25, 7")
    a("s_lshl_b32 s31, s28, 6")
    a("s_add_u32 s30, s30, s31")
    a("v_lshlrev_b32 v8, 10, v5")
    a("v_lshl_add_u32 v8, v3, 3, v8")
    a("v_add_u32 v8, s30, v8")
    a("v_add_u32 v9, 0x4000, v8")
    a("v_lshlrev_b32 v10, 3, v3")
    a("v_add_u32 v10, s30, v10")
    if which == 2:
        AB = [64]
    else:
        AB = [32, 144]

    def act_loads(c):
        b = AB[c % len(AB)]
        for t in range(2):
            for ks in range(KS):
                off = c * KC * 2 + ks * 64
                a("buffer_load_dwordx4 %s, v%d, s[12:15], 0 offen offset:%d" % (vr(b + t * KS * 4 + ks * 4), 6 + t, off))

    a("v_lshrrev_b32 v11, 3, v1")
    a("v_bfe_u32 v12, v1, 1, 2")
    a("v_bfe_u32 v13, v1, 4, 1")
    a("v_xor_b32 v12, v12, v13")
    a("v_xor_b32 v13, 2, v12")
    a("v_and_b32 v14, 1, v1")
    a("v_lshlrev_b32 v14, 4, v14")
    a("v_lshl_add_u32 v14, v11, 10, v14")
    a("s_lshl_b32 s33, s25, 7")
    a("v_add_u32 v14, s33, v14")
    a("v_lshl_add_u32 v12, v12, 5, v14")
    a("v_lshl_add_u32 v13, v13, 5, v14")
    a("v_add_u32 v13, 8192, v13")
    NI = CHB // 1024
    NIW = NI // 4

    def w_dma(c):
        buf = c % 2
        a("s_mul_i32 s34, s26, %d" % (NIW * 1024))
        a("s_mul_i32 s35, s26, %d" % (NIW * 8 * 1024))
        for t in range(NIW):
            a("s_add_u32 m0, s34, %d" % (buf * CHB + t * 1024))
            a("s_add_u32 s36, s35, %d" % (c * KC * 1024 + (t // 2) * 16384))
            a("buffer_load_dwordx4 v%d, s[16:19], s36 offen lds" % (12 + t % 2))

    act_loads(0)
    w_dma(0)
    if nchunk > 1:
        w_dma(1)
        act_loads(1)
    for t in range(2):
        for j in range(2):
            a("buffer_load_dwordx2 %s, v%d, s[20:23], 0 offen offset:%d" % (vr(16 + (t * 2 + j) * 2, 2), 8 + t, j * 32))
    if which == 4:
        for j in range(2):
            a("buffer_load_dwordx2 %s, v10, s[44:47], 0 offen offset:%d" % (vr(24 + j * 2, 2), j * 32))
    a("v_lshrrev_b32 v28, 2, v2")
    a("v_and_b32 v29, 3, v2")
    a("v_lshl_add_u32 v30, v3, 3, v28")
    a("v_lshlrev_b32 v30, 7, v30")
    a("v_lshl_add_u32 v30, v29, 3, v30")
    a("v_lshrrev_b32 v28, 1, v28")
    a("v_and_b32 v29, 1, v3")
    a("v_lshl_add_u32 v28, v29, 1, v28")
    a("s_lshl_b32 s37, s28, 1")
    a("v_xor_b32 v29, s37, v28")
    a("v_lshl_add_u32 v14, v29, 5, v30")
    a("v_xor_b32 v29, 1, v29")
    a("v_lshl_add_u32 v15, v29, 5, v30")
    a("v_add_u32 v5, %d, v14" % CHB)
    a("v_add_u32 v11, %d, v15" % CHB)
    for i in range(16):
        a("v_accvgpr_write_b32 a%d, 0" % i)
    WB = [16, 32]

    def tr_reads(c, kp, buf):
        for u in range(2):
            ks = kp * 2 + u
            for j in range(2):
                for h in range(2):
                    off = ks * 4096 + h * 512
                    areg = [[14, 15], [5, 11]][c % 2][j]
                    a("ds_read_b64_tr_b16 %s, v%d offset:%d" % (ar(WB[buf] + u * 8 + j * 4 + h * 2, 2), areg, off))

    for c in range(nchunk):
        if nchunk == 1 or c == nchunk - 1:
            a("s_waitcnt vmcnt(0)")
        else:
            a("s_waitcnt vmcnt(%d)" % (NIW + 2 * KS + (6 if (which == 4 and c == 0) else 0)))
        a("s_barrier")
        b = AB[c % len(AB)]
        tr_reads(c, 0, 0)
        for kp in range(KS // 2):
            a("s_waitcnt lgkmcnt(0)")
            if kp + 1 < KS // 2:
                tr_reads(c, kp + 1, (kp + 1) & 1)
            wb = WB[kp & 1]
            for u in range(2):
                ks = kp * 2 + u
                for t in range(2):
                    for j in range(2):
                        acc = (t * 2 + j) * 4
                        a("v_mfma_f32_16x16x32_bf16 %s, %s, %s, %s" % (ar(acc), ar(wb + u * 8 + j * 4), vr(b + t * KS * 4 + ks * 4), ar(acc)))
        if c + 2 < nchunk:
            a("s_barrier")
            w_dma(c + 2)
            a("s_nop 4")
            act_loads(c + 2)
    a("s_nop 7")
    a("s_nop 7")
    for t in range(2):
        for j in range(2):
            acc = (t * 2 + j) * 4
            res = 16 + (t * 2 + j) * 2
            for r in range(4):
                a("v_accvgpr_read_b32 v%d, a%d" % (28 + r, acc + r))
            a("v_lshlrev_b32 v4, 16, v%d" % res)
            a("v_add_f32 v28, v28, v4")
            a("v_and_b32 v4, 0xffff0000, v%d" % res)
            a("v_add_f32 v29, v29, v4")
            a("v_lshlrev_b32 v4, 16, v%d" % (res + 1))
            a("v_add_f32 v30, v30, v4")
            a("v_and_b32 v4, 0xffff0000, v%d" % (res + 1))
            a("v_add_f32 v31, v31, v4")
            if which == 4:
                bb = 24 + j * 2
                a("v_lshlrev_b32 v4, 16, v%d" % bb)
                a("v_add_f32 v28, v28, v4")
                a("v_and_b32 v4, 0xffff0000, v%d" % bb)
                a("v_add_f32 v29, v29, v4")
                a("v_lshlrev_b32 v4, 16, v%d" % (bb + 1))
                a("v_add_f32 v30, v30, v4")
                a("v_and_b32 v4, 0xffff0000, v%d" % (bb + 1))
                a("v_add_f32 v31, v31, v4")
            a("v_cvt_pk_bf16_f32 v%d, v28, v29" % res)
            a("v_cvt_pk_bf16_f32 v%d, v30, v31" % (res + 1))
            a("buffer_store_dwordx2 %s, v%d, s[40:43], 0 offen offset:%d" % (vr(res, 2), 8 + t, j * 32))
    a.label(done)
    a("s_endpgm")
    return name, 256 + 48, 256, (2 if nchunk > 1 else 1) * CHB


def gen_k3(a):
    name = "k3_w1_kernel"
    kernel_head(a, name)
    done = "L_k3_done"
    common_prologue(a, 256, done)
    a("s_lshr_b32 s24, s2, 4")
    a("s_and_b32 s25, s2, 15")
    srd_off(a, 12, P_WS, WS_H, 2048 * 512 * 2)
    srd(a, 16, P_W1, 512 * 1792 * 2)
    srd_off(a, 20, P_WS, WS_HID, 2048 * 1792 * 2)
    srd(a, 40, P_B1, 1792 * 2)
    a("s_lshl_b32 s27, s24, 7")
    a("s_lshl_b32 s28, s26, 5")
    a("s_add_u32 s28, s28, s27")
    a("v_add_u32 v5, s28, v2")
    a("v_lshlrev_b32 v6, 10, v5")
    a("v_lshl_add_u32 v6, v3, 4, v6")
    a("v_add_u32 v7, 0x4000, v6")
    for ks in range(16):
        a("buffer_load_dwordx4 %s, v6, s[12:15], 0 offen offset:%d" % (vr(128 + 4 * ks), ks * 64))
    for ks in range(16):
        a("buffer_load_dwordx4 %s, v7, s[12:15], 0 offen offset:%d" % (vr(192 + 4 * ks), ks * 64))
    a("s_mul_i32 s30, s25, 224")
    for q in range(7):
        d = 8 + q
        a("v_add_u32 v16, %d, v1" % (q * 64))
        a("v_mul_u32_u24 v17, 2341, v16")
        a("v_lshrrev_b32 v17, 15, v17")
        a("v_mul_u32_u24 v18, 14, v17")
        a("v_sub_u32 v18, v16, v18")
        a("v_lshrrev_b32 v19, 1, v18")
        a("v_and_b32 v18, 1, v18")
        a("v_bfe_u32 v16, v17, 3, 1")
        a("v_lshlrev_b32 v16, 2, v16")
        a("v_sub_u32 v19, v19, v16")
        a("v_add_u32 v16, 7, v19")
        a("v_cmp_gt_i32 vcc, 0, v19")
        a("s_nop 1")
        a("v_cndmask_b32 v19, v19, v16, vcc")
        a("v_lshlrev_b32 v19, 5, v19")
        a("v_lshl_add_u32 v19, v18, 4, v19")
        a("v_mul_u32_u24 v17, 3584, v17")
        a("v_add3_u32 v%d, v17, v19, s30" % d)
    a("s_mul_i32 s31, s26, %d" % (28 * 1024))
    a("s_mul_i32 s32, s26, %d" % (4 * 32 * 3584))
    for t in range(28):
        a("s_add_u32 m0, s31, %d" % (t * 1024))
        a("s_add_u32 s33, s32, %d" % ((t // 7) * 32 * 3584))
        a("buffer_load_dwordx4 v%d, s[16:19], s33 offen lds" % (8 + t % 7))
    a("v_lshlrev_b32 v16, 3, v3")
    a("v_add_u32 v16, s30, v16")
    for jp in range(7):
        a("buffer_load_dwordx2 %s, v16, s[40:43], 0 offen offset:%d" % (vr(100 + 2 * jp, 2), jp * 32))
    a("s_mov_b32 s34, 3584")
    a("v_mul_lo_u32 v15, v5, s34")
    a("v_add_u32 v15, v15, v16")
    a("v_add_u32 v21, %d, v15" % (16 * 3584))
    a("v_lshrrev_b32 v16, 2, v2")
    a("v_and_b32 v17, 3, v2")
    a("v_lshl_add_u32 v16, v3, 3, v16")
    a("v_mul_u32_u24 v16, 224, v16")
    a("v_lshl_add_u32 v16, v17, 3, v16")
    a("v_and_b32 v17, 1, v3")
    a("v_lshl_add_u32 v22, v17, 7, v16")
    a("v_mul_u32_u24 v17, 96, v17")
    a("v_sub_u32 v23, v16, v17")
    a("v_add_u32 v24, %d, v22" % (8 * 7168))
    a("v_add_u32 v25, %d, v23" % (8 * 7168))
    a("v_xor_b32 v18, 16, v1")
    a("v_lshlrev_b32 v18, 2, v18")
    a("v_xor_b32 v19, 32, v1")
    a("v_lshlrev_b32 v19, 2, v19")
    a("v_mov_b32 v20, 0x3f803f80")
    for i in range(4):
        a("v_mov_b32 v%d, 0x3f803f80" % (96 + i))
    for i in range(64):
        a("v_accvgpr_write_b32 a%d, 0" % i)
    a("s_waitcnt vmcnt(0)")
    a("s_barrier")
    row_stats(a, 128, 64, 26, 27, 20)
    row_stats(a, 192, 64, 28, 29, 20)
    reduce_groups(a, [26, 27, 28, 29], 30, 18, 19)
    a("v_mov_b32 v34, %s" % f32hex(1.0 / 512))
    a("v_mov_b32 v35, %s" % f32hex(1e-5))
    for t in range(2):
        s_, q_ = 26 + 2 * t, 27 + 2 * t
        a("v_mul_f32 v%d, v%d, v34" % (s_, s_))
        a("v_mul_f32 v%d, v%d, v34" % (q_, q_))
        a("v_fma_f32 v%d, -v%d, v%d, v%d" % (q_, s_, s_, q_))
        a("v_max_f32 v%d, 0, v%d" % (q_, q_))
        a("v_add_f32 v30, v%d, v35" % q_)
        a("v_rcp_f32 v31, v30")
        a("v_rsq_f32 v30, v30")
        a("s_nop 0")
        a("v_fma_f32 v31, v%d, v31, v35" % q_)
        a("v_rsq_f32 v31, v31")
        a("s_nop 0")
        a("v_mul_f32 v%d, v30, v31" % q_)
        a("v_mul_f32 v%d, v%d, v%d" % (s_, s_, q_))
    WB = [64, 96]

    def tr_reads(ks, buf):
        kk = ks % 8
        for jp in range(7):
            b = (22 if jp < 3 else 23) + (2 if ks >= 8 else 0)
            for h in range(2):
                off = kk * 7168 + h * 896 + jp * 32
                a("ds_read_b64_tr_b16 %s, v%d offset:%d" % (ar(WB[buf] + jp * 4 + h * 2, 2), b, off))

    def mainloop(extra):
        tr_reads(0, 0)
        for ks in range(16):
            a("s_waitcnt lgkmcnt(0)")
            if ks + 1 < 16:
                tr_reads(ks + 1, (ks + 1) & 1)
            wb = WB[ks & 1]
            for jp in range(7):
                a("v_mfma_f32_16x16x32_bf16 %s, %s, %s, %s" % (ar(jp * 4), ar(wb + jp * 4), vr(128 + 4 * ks), ar(jp * 4)))
                a("v_mfma_f32_16x16x32_bf16 %s, %s, %s, %s" % (ar(28 + jp * 4), ar(wb + jp * 4), vr(192 + 4 * ks), ar(28 + jp * 4)))
            for (accb, jp) in extra:
                a("v_mfma_f32_16x16x32_bf16 %s, %s, %s, %s" % (ar(accb), ar(wb + jp * 4), vr(96), ar(accb)))

    for w in range(4):
        if w < 3:
            a("s_cmp_lg_u32 s26, %d" % w)
            a("s_cbranch_scc1 L_k3_w%d_next" % w)
        extra = [(56, w)]
        if w < 3:
            extra.append((60, w + 4))
        mainloop(extra)
        if w < 3:
            a("s_branch L_k3_loop_done")
            a.label("L_k3_w%d_next" % w)
    a.label("L_k3_loop_done")
    a("s_nop 7")
    a("s_nop 7")
    CS = 114688
    a("v_lshlrev_b32 v36, 4, v3")
    a("v_add_u32 v36, %d, v36" % CS)
    a("s_lshl_b32 s36, s26, 6")
    a("v_add_u32 v37, s36, v36")
    a("v_cmp_eq_u32 vcc, 0, v2")
    a("s_and_saveexec_b64 s[34:35], vcc")
    a("ds_write_b128 v37, %s" % (ar(56)))
    a("s_cmp_lt_u32 s26, 3")
    a("s_cbranch_scc0 L_k3_nocs2")
    a("ds_write_b128 v37, %s offset:256" % (ar(60)))
    a.label("L_k3_nocs2")
    a("s_mov_b64 exec, s[34:35]")
    a("s_waitcnt lgkmcnt(0)")
    a("s_barrier")
    for jp in range(7):
        a("ds_read_b128 %s, v36 offset:%d" % (vr(40 + jp * 4), jp * 64))
    C0 = 0.7978845608028654
    a("v_mov_b32 v34, %s" % f32hex(-2.0 * LOG2E * C0))
    a("v_mov_b32 v35, %s" % f32hex(-2.0 * LOG2E * C0 * 0.044715))
    a("s_waitcnt lgkmcnt(0)")
    for t in range(2):
        m_, r_ = 26 + 2 * t, 27 + 2 * t
        for jp in range(7):
            accb = t * 28 + jp * 4
            same = True
            for r in range(4):
                a("v_accvgpr_read_b32 v%d, a%d" % (128 + r, accb + r))
            a("v_lshlrev_b32 v132, 16, v%d" % (100 + 2 * jp))
            a("v_and_b32 v133, 0xffff0000, v%d" % (100 + 2 * jp))
            a("v_lshlrev_b32 v134, 16, v%d" % (101 + 2 * jp))
            a("v_and_b32 v135, 0xffff0000, v%d" % (101 + 2 * jp))
            for r in range(4):
                a("v_fma_f32 v%d, -v%d, v%d, v%d" % (132 + r, m_, 40 + jp * 4 + r, 132 + r))
            for r in range(4):
                a("v_fma_f32 v%d, v%d, v%d, v%d" % (128 + r, 128 + r, r_, 132 + r))
            for r in range(4):
                a("v_mul_f32 v%d, v%d, v%d" % (132 + r, 128 + r, 128 + r))
            for r in range(4):
                a("v_fma_f32 v%d, v%d, v35, v34" % (132 + r, 132 + r))
            for r in range(4):
                a("v_mul_f32 v%d, v%d, v%d" % (132 + r, 132 + r, 128 + r))
            for r in range(4):
                a("v_exp_f32 v%d, v%d" % (132 + r, 132 + r))
            a("s_nop 0")
            for r in range(4):
                a("v_add_f32 v%d, 1.0, v%d" % (132 + r, 132 + r))
            for r in range(4):
                a("v_rcp_f32 v%d, v%d" % (132 + r, 132 + r))
            a("s_nop 0")
            for r in range(4):
                a("v_mul_f32 v%d, v%d, v%d" % (128 + r, 128 + r, 132 + r))
            ob = 136 + ((t * 7 + jp) % 8) * 2
            a("v_cvt_pk_bf16_f32 v%d, v128, v129" % ob)
            a("v_cvt_pk_bf16_f32 v%d, v130, v131" % (ob + 1))
            a("buffer_store_dwordx2 %s, v%d, s[20:23], 0 offen offset:%d" % (vr(ob, 2), 15 if t == 0 else 21, jp * 32))
    a.label(done)
    a("s_endpgm")
    return name, 256 + 124, 256, 114688 + 512


def main():
    a = Asm()
    ks = []
    ks.append(gen_k1(a))
    ks.append(gen_k24(a, 2))
    ks.append(gen_k3(a))
    ks.append(gen_k24(a, 4))
    head = open("cdna_kernels/%s.s.ref" % NAME).read().split("; Override launch")[0]
    out = head
    for (name, nv, acc, lds) in ks:
        out += "; @launch kernel=%s grid=(256,1,1) block=(256,1,1) lds=%d\n" % (name, lds)
    out += '.amdgcn_target "amdgcn-amd-amdhsa--gfx950"\n.text\n'
    out += a.text()
    out += '.section .rodata,"a"\n'
    for (name, nv, acc, lds) in ks:
        out += ".p2align 6\n" + kernel_desc(name, nv, acc)
    open(OUT, "w").write(out)
    print("wrote", OUT, len(out))


if __name__ == "__main__":
    assert all((sl * 171) >> 11 == sl // 12 for sl in range(192))
    assert all((sl * 2341) >> 15 == sl // 14 for sl in range(448))
    main()
```

```python
import sys, struct

NAME = "sequential_preLN__sliding_local_dilated__mixer_channel_mlp__prompt"
OUT = "cdna_kernels/%s.s" % NAME

WS_O = 0
WS_H = 2 * 1024 * 1024
WS_HID = 4 * 1024 * 1024
LOG2E = 1.4426950408889634
STAMP = False
EXP = ""
STREG = list(range(86, 100)) + list(range(52, 60))


def f32hex(x):
    return "0x%08x" % struct.unpack("<I", struct.pack("<f", x))[0]


class Asm:
    def __init__(self):
        self.lines = []
        self.nst = 0
        self.kidx = 0

    def __call__(self, s):
        self.lines.append("    " + s)

    def label(self, s):
        self.lines.append(s + ":")

    def raw(self, s):
        self.lines.append(s)

    def text(self):
        return "\n".join(self.lines) + "\n"

    def stamp(self):
        if not STAMP:
            return
        self("s_memtime s[100:101]")
        self("s_waitcnt lgkmcnt(0)")
        self("s_mov_b32 s%d, s100" % STREG[self.nst])
        self.nst += 1

    def stamp_dump(self):
        if not STAMP:
            return
        self("s_waitcnt vmcnt(0)")
        self.stamp()
        n = self.nst
        self("s_cmp_lg_u32 s26, 0")
        self("s_cbranch_scc1 L_st_skip%d" % self.kidx)
        self("s_add_u32 s60, s84, %d" % (12 * 1024 * 1024 + self.kidx * 65536))
        self("s_addc_u32 s61, s85, 0")
        self("s_and_b32 s61, s61, 0xffff")
        self("s_mov_b32 s62, 65536")
        self("s_mov_b32 s63, 0x20000")
        self("s_lshl_b32 s3, s2, 7")
        self("v_mov_b32 v1, s3")
        for i in range(n):
            self("v_mov_b32 v2, s%d" % STREG[i])
            self("buffer_store_dword v2, v1, s[60:63], 0 offen offset:%d" % (4 * i))
        self.label("L_st_skip%d" % self.kidx)
        self.nst = 0
        self.kidx += 1


def srd(a, d, ptr, nbytes, off=0):
    if off:
        a("s_add_u32 s%d, s%d, %d" % (d, ptr, off))
        a("s_addc_u32 s%d, s%d, 0" % (d + 1, ptr + 1))
        a("s_and_b32 s%d, s%d, 0xffff" % (d + 1, d + 1))
    else:
        a("s_mov_b32 s%d, s%d" % (d, ptr))
        a("s_and_b32 s%d, s%d, 0xffff" % (d + 1, ptr + 1))
    a("s_mov_b32 s%d, %d" % (d + 2, nbytes))
    a("s_mov_b32 s%d, 0x00020000" % (d + 3))


def kernel_head(a, name):
    a.raw(".globl %s" % name)
    a.raw(".p2align 8")
    a.raw(".type %s,@function" % name)
    a.label(name)


def kernel_desc(name, nvgpr, accum, nsgpr=102):
    return """.amdhsa_kernel %s
  .amdhsa_next_free_vgpr %d
  .amdhsa_next_free_sgpr %d
  .amdhsa_accum_offset %d
  .amdhsa_group_segment_fixed_size 0
  .amdhsa_kernarg_size 88
  .amdhsa_user_sgpr_count 2
  .amdhsa_user_sgpr_kernarg_segment_ptr 1
  .amdhsa_system_sgpr_workgroup_id_x 1
.end_amdhsa_kernel
""" % (name, nvgpr, nsgpr, accum)


def vr(b, n=4):
    return "v[%d:%d]" % (b, b + n - 1)


P_X, P_WQKV, P_WO, P_W1, P_B1, P_W2, P_B2, P_OUT, P_WS = 64, 66, 68, 72, 74, 76, 78, 80, 84


def common_prologue(a, nwg, done):
    if "half" in EXP:
        nwg = 128
    if "quarter" in EXP:
        nwg = 64
    a("s_cmp_ge_u32 s2, %d" % nwg)
    a("s_cbranch_scc1 %s" % done)
    a("s_load_dwordx16 s[64:79], s[0:1], 0")
    a("s_load_dwordx4 s[80:83], s[0:1], 64")
    a("s_load_dwordx2 s[84:85], s[0:1], 80")
    a("v_and_b32 v1, 63, v0")
    a("v_lshrrev_b32 v4, 6, v0")
    a("v_and_b32 v2, 15, v0")
    a("v_bfe_u32 v3, v0, 4, 2")
    a("v_readfirstlane_b32 s26, v4")
    a("s_waitcnt lgkmcnt(0)")
    a("s_lshr_b32 s51, s26, 2")
    a("s_and_b32 s26, s26, 3")
    a.stamp()


def map16(a):
    a("s_bfe_u32 s24, s2, 0x20001")
    a("s_lshl_b32 s24, s24, 2")
    a("s_lshr_b32 s25, s2, 6")
    a("s_add_u32 s24, s24, s25")
    a("s_and_b32 s25, s2, 1")
    a("s_lshl_b32 s25, s25, 3")
    a("s_bfe_u32 s3, s2, 0x30003")
    a("s_add_u32 s25, s25, s3")


def map32x8(a):
    a("s_and_b32 s24, s2, 7")
    a("s_lshl_b32 s24, s24, 2")
    a("s_lshr_b32 s25, s2, 6")
    a("s_add_u32 s24, s24, s25")
    a("s_bfe_u32 s25, s2, 0x30003")


def merge3(mf, rd, va, tail):
    out = []
    if "novalu" in EXP:
        va = []
    if "nord" in EXP:
        rd = []
    if "nomf" in EXP:
        mf = ["s_nop 0"]
        tail = []
    if "trhalf" in EXP:
        rd = [r for i, r in enumerate(rd) if "tr" not in r or i % 2 == 0]
    if "nob128" in EXP:
        rd = [r for r in rd if "b128" not in r]
    n = len(mf)
    ri = vi = 0
    for i, m in enumerate(mf):
        out.append(m)
        rt = (len(rd) * (i + 1) + n - 1) // n
        vt = (len(va) * (i + 1) + n - 1) // n
        while ri < rt:
            out.append(rd[ri]); ri += 1
        while vi < vt:
            out.append(va[vi]); vi += 1
    out += rd[ri:] + va[vi:] + tail
    return out


def interleave(mf, va, lead=0):
    out = []
    n = len(mf)
    per = -(-len(va) // max(n, 1))
    vi = 0
    for i, m in enumerate(mf):
        out.append(m)
        for _ in range(per):
            if vi < len(va):
                out.append(va[vi])
                vi += 1
    out += va[vi:]
    return out


class Pipe:
    def __init__(self, a, K, KC, NBUF, RA, A_RS, BROW, B_RS, nA, nB, BPAT, bt_adv):
        self.a = a
        self.K, self.KC, self.NBUF = K, KC, NBUF
        self.NC = K // KC
        self.KSC = KC // 32
        self.AROW = KC * 2
        self.RA, self.A_RS, self.BROW, self.B_RS = RA, A_RS, BROW, B_RS
        self.nA, self.nB = nA, nB
        self.BOFF = nA * 4 * 1024
        self.BUFSZ = (nA + nB) * 4 * 1024
        self.BPAT = BPAT
        self.bt_adv = bt_adv
        self.rows_per_instr = 1024 // self.AROW
        self.ND = nA + nB

    def a_pattern(self, dst, rowbase_s):
        a = self.a
        rpi = self.rows_per_instr
        if rpi == 8:
            a("v_lshrrev_b32 v5, 3, v1")
            a("v_and_b32 v6, 7, v1")
            a("s_lshl_b32 s3, s26, 2")
            a("v_lshrrev_b32 v7, 1, v5")
            a("v_add_u32 v7, s3, v7")
            a("v_and_b32 v7, 7, v7")
        else:
            a("v_lshrrev_b32 v5, 4, v1")
            a("v_and_b32 v6, 15, v1")
            a("s_lshl_b32 s3, s26, 2")
            a("v_add_u32 v7, s3, v5")
        a("v_xor_b32 v6, v6, v7")
        a("s_mul_i32 s3, s26, %d" % rpi)
        a("s_add_u32 s3, s3, s%d" % rowbase_s)
        a("v_add_u32 v5, s3, v5")
        a("s_mov_b32 s3, %d" % self.A_RS)
        a("v_mul_lo_u32 v5, v5, s3")
        a("v_lshl_add_u32 v%d, v6, 4, v5" % dst)

    def la_pattern(self, dst):
        a = self.a
        if self.rows_per_instr == 8:
            a("v_lshrrev_b32 v5, 1, v2")
        else:
            a("v_mov_b32 v5, v2")
        a("v_mul_u32_u24 v6, %d, v2" % self.AROW)
        for ks in range(self.KSC):
            a("v_add_u32 v7, %d, v3" % (4 * ks))
            a("v_xor_b32 v7, v7, v5")
            a("v_lshl_add_u32 v%d, v7, 4, v6" % (dst + ks))

    def init_state(self):
        a = self.a
        a("s_mov_b32 s40, 0")
        a("s_mov_b32 s41, 0")
        a("s_mov_b32 s42, 0")
        a("s_mov_b32 s43, 0")
        a("s_mov_b32 s44, 0")
        a("s_lshl_b32 s46, s26, 10")

    def dma(self, pat, srd_, so):
        if "contig" in EXP:
            self.cnt = getattr(self, "cnt", 0) + 1
            self.a("s_lshl_b32 s49, s40, 15")
            self.a("s_add_u32 s49, s49, %d" % ((self.cnt % 32) * 4096 % 262144))
            self.a("s_lshl_b32 s50, s2, 11")
            self.a("s_add_u32 s49, s49, s50")
            self.a("v_lshlrev_b32 v5, 4, v0")
            self.a("buffer_load_dwordx4 v5, s[%d:%d], s49 offen lds" % (srd_, srd_ + 3))
        elif "vgpr" in EXP:
            self.rot = (getattr(self, "rot", 0) + 1) % 8
            self.a("buffer_load_dwordx4 %s, v%d, s[%d:%d], s%d offen" % (vr(64 + 4 * self.rot), pat, srd_, srd_ + 3, so))
        else:
            self.a("buffer_load_dwordx4 v%d, s[%d:%d], s%d offen lds" % (pat, srd_, srd_ + 3, so))

    def issue_chunk(self, APAT):
        a = self.a
        a("s_add_u32 s47, s41, s46")
        for t in range(self.nA):
            a("s_add_u32 m0, s47, %d" % (t * 4096))
            if isinstance(APAT, list):
                a("s_nop 0")
                self.dma(APAT[t], 12, 42)
            else:
                a("s_add_u32 s48, s42, %d" % (t * 4 * self.rows_per_instr * self.A_RS))
                self.dma(APAT, 12, 48)
        for t in range(self.nB):
            a("s_add_u32 m0, s47, %d" % (self.BOFF + t * 4096))
            a("s_add_u32 s48, s43, %d" % (t * self.bt_adv))
            self.dma(self.BPAT[t], 16, 48)
        a("s_add_u32 s41, s41, %d" % self.BUFSZ)
        a("s_cmp_ge_u32 s41, %d" % (self.BUFSZ * self.NBUF))
        a("s_cselect_b32 s41, 0, s41")
        a("s_add_u32 s42, s42, %d" % (self.KC * 2))
        a("s_add_u32 s43, s43, %d" % (self.KC * self.B_RS))

    def run(self, name, APAT, addr_regs, reads, compute):
        a = self.a
        NB, NC, KSC, ND = self.NBUF, self.NC, self.KSC, self.ND
        self.name, self.APAT = name, APAT
        a("s_cmp_lg_u32 s51, 0")
        a("s_cbranch_scc1 L_%s_loader" % name)
        for (cur, base) in addr_regs:
            a("v_mov_b32 v%d, v%d" % (cur, base))
        a.stamp()
        a("s_barrier")
        a.stamp()
        for l in reads(0, 0):
            a(l)
        a("s_waitcnt lgkmcnt(0)")
        a.label("L_%s_loop" % name)
        for ks in range(KSC - 1):
            mf, va, tail = compute(ks, ks & 1)
            for l in merge3(mf, reads(ks + 1, (ks + 1) & 1), va, tail):
                a(l)
            a("s_waitcnt lgkmcnt(0)")
        a("s_barrier")
        a("s_add_u32 s44, s44, %d" % self.BUFSZ)
        a("s_cmp_ge_u32 s44, %d" % (self.BUFSZ * NB))
        a("s_cselect_b32 s44, 0, s44")
        for (cur, base) in addr_regs:
            a("v_add_u32 v%d, s44, v%d" % (cur, base))
        mf, va, tail = compute(KSC - 1, (KSC - 1) & 1)
        for l in merge3(mf, reads(0, 0), va, tail):
            a(l)
        a("s_waitcnt lgkmcnt(0)")
        a("s_add_u32 s40, s40, 1")
        a("s_cmp_lt_u32 s40, %d" % NC)
        a("s_cbranch_scc1 L_%s_loop" % name)
        a("s_nop 7")
        a("s_nop 7")
        a.stamp()

    def loader(self, n_epi_barriers):
        a = self.a
        name, APAT = self.name, self.APAT
        NB, NC, KSC, ND = self.NBUF, self.NC, self.KSC, self.ND
        a.label("L_%s_loader" % name)
        for c in range(2):
            self.issue_chunk(APAT)
        a("s_waitcnt vmcnt(%d)" % ND)
        a("s_barrier")
        for c in range(2, NB):
            self.issue_chunk(APAT)
        a.label("L_%s_lloop" % name)
        a("s_cmp_lt_u32 s40, %d" % (NC - NB + 1))
        a("s_cbranch_scc1 L_%s_wfull" % name)
        for r in range(NB - 3, -1, -1):
            if NC - 2 - r >= 0:
                a("s_cmp_eq_u32 s40, %d" % (NC - 2 - r))
                a("s_cbranch_scc0 L_%s_w%d" % (name, r))
                a("s_waitcnt vmcnt(%d)" % (ND * r))
                a("s_branch L_%s_wdone" % name)
                a.label("L_%s_w%d" % (name, r))
        a("s_waitcnt vmcnt(0)")
        a("s_branch L_%s_wdone" % name)
        a.label("L_%s_wfull" % name)
        a("s_waitcnt vmcnt(%d)" % (ND * (NB - 2)))
        a.label("L_%s_wdone" % name)
        a("s_barrier")
        a("s_cmp_lt_u32 s40, %d" % (NC - NB))
        a("s_cbranch_scc0 L_%s_noissue" % name)
        self.issue_chunk(APAT)
        a.label("L_%s_noissue" % name)
        a("s_add_u32 s40, s40, 1")
        a("s_cmp_lt_u32 s40, %d" % NC)
        a("s_cbranch_scc1 L_%s_lloop" % name)
        for i in range(n_epi_barriers):
            a("s_barrier")
        a("s_endpgm")


def mfma(d, A, B):
    return "v_mfma_f32_16x16x32_bf16 %s, %s, %s, %s" % (vr(d), vr(A), vr(B), vr(d))


def reduce_groups(a, regs, tmp, addr16, addr32):
    for addr in (addr16, addr32):
        for i, r in enumerate(regs):
            a("ds_bpermute_b32 v%d, v%d, v%d" % (tmp + i, addr, r))
        a("s_waitcnt lgkmcnt(0)")
        for i, r in enumerate(regs):
            a("v_add_f32 v%d, v%d, v%d" % (r, r, tmp + i))


def stats_extract(a, SQ, ST, nt):
    a("v_and_b32 v4, 3, v2")
    a("v_cmp_eq_u32 s[36:37], 1, v4")
    a("v_cmp_eq_u32 s[38:39], 2, v4")
    a("v_cmp_eq_u32 vcc, 3, v4")
    a("v_lshrrev_b32 v4, 2, v2")
    a("v_lshl_add_u32 v4, v4, 4, v2")
    a("v_lshlrev_b32 v4, 2, v4")
    for t in range(nt):
        g = SQ + 8 * t + 4
        a("v_cndmask_b32 v%d, v%d, v%d, s[36:37]" % (g, g, g + 1))
        a("v_cndmask_b32 v%d, v%d, v%d, s[38:39]" % (g, g, g + 2))
        a("v_cndmask_b32 v%d, v%d, v%d, vcc" % (g, g, g + 3))
        a("ds_bpermute_b32 v%d, v4, v%d" % (ST + 2 * t + 1, g))
        a("v_mov_b32 v%d, v%d" % (ST + 2 * t, SQ + 8 * t))
    a("s_waitcnt lgkmcnt(0)")


def mod_wrap(a, v, m, tmp):
    a("v_subrev_u32 v%d, %d, v%d" % (tmp, m, v))
    a("v_min_u32 v%d, v%d, v%d" % (v, v, tmp))


def gen_k1(a):
    name = "k1_qkv_attn_kernel"
    kernel_head(a, name)
    done = "L_k1_done"
    common_prologue(a, 256, done)
    map16(a)
    srd(a, 12, P_X, 2048 * 512 * 2)
    srd(a, 16, P_WQKV, 512 * 1536 * 2)
    srd(a, 20, P_WS, 2048 * 512 * 2, WS_O)
    P = Pipe(a, 512, 64, 4, 160, 1024, 192, 3072, 5, 3, [9, 10, 11], 0)
    a("s_lshl_b32 s27, s24, 7")
    a("s_sub_u32 s28, s27, 16")
    a("s_lshl_b32 s30, s25, 6")
    P.a_pattern(8, 28)
    for t in range(3):
        d = 9 + t
        a("s_lshl_b32 s3, s26, 6")
        a("s_add_u32 s3, s3, %d" % (t * 256))
        a("v_add_u32 v12, s3, v1")
        a("v_mul_u32_u24 v13, 2731, v12")
        a("v_lshrrev_b32 v13, 15, v13")
        a("v_mul_u32_u24 v14, 12, v13")
        a("v_sub_u32 v14, v12, v14")
        a("v_lshrrev_b32 v15, 1, v14")
        a("v_and_b32 v14, 1, v14")
        a("v_bfe_u32 v16, v13, 3, 1")
        a("v_sub_u32 v15, v15, v16")
        a("v_add_u32 v15, 6, v15")
        mod_wrap(a, 15, 6, 16)
        a("v_lshrrev_b32 v16, 1, v15")
        a("v_and_b32 v15, 1, v15")
        a("v_lshlrev_b32 v15, 5, v15")
        a("v_lshl_add_u32 v15, v14, 4, v15")
        a("v_lshl_add_u32 v15, v16, 10, v15")
        a("v_mul_u32_u24 v13, 3072, v13")
        a("v_add3_u32 v%d, v13, v15, s30" % d)
    P.la_pattern(12)
    a("v_lshrrev_b32 v5, 2, v2")
    a("v_and_b32 v6, 3, v2")
    a("v_lshl_add_u32 v5, v3, 3, v5")
    a("v_mul_u32_u24 v5, 192, v5")
    a("v_lshl_add_u32 v5, v6, 3, v5")
    a("v_add_u32 v5, %d, v5" % P.BOFF)
    a("v_and_b32 v6, 1, v3")
    a("v_lshl_add_u32 v14, v6, 5, v5")
    a("v_mul_u32_u24 v7, 160, v6")
    a("v_sub_u32 v15, 160, v7")
    a("v_add_u32 v15, v15, v5")
    a("s_add_u32 s3, s26, 2")
    a("v_add_u32 v7, s3, v6")
    mod_wrap(a, 7, 6, 16)
    a("v_lshl_add_u32 v16, v7, 5, v5")
    a("s_and_b32 s3, s26, 1")
    a("v_add_u32 v7, s3, v6")
    a("v_lshl_add_u32 v17, v7, 5, v5")
    addr_regs = [(18, 12), (19, 13), (20, 14), (21, 15), (22, 16), (23, 17)]
    ACC = 32
    WS_ = [88, 120]
    AS_ = [152, 164]
    ST = 176
    SQ = 208
    ONES = 232
    for i in range(24):
        a("v_mov_b32 v%d, 0" % (SQ + i))
    for i in range(4):
        a("v_mov_b32 v%d, 0x3f803f80" % (ONES + i))
    a("v_mov_b32 v24, 0x3f803f80")
    a("v_cmp_eq_u32 s[34:35], 0, v2")
    for i in range(56):
        a("v_mov_b32 v%d, 0" % (ACC + i))
    for i in range(6):
        a("v_mov_b32 v%d, 0" % (ST + i))
    P.init_state()
    arow = [16, 32, 0]
    a("s_mul_i32 s3, s26, %d" % (32 * 128))
    a("v_add_u32 v25, s3, v12")
    a("v_add_u32 v26, s3, v13")
    addr_regs += [(28, 25), (29, 26)]

    def reads(ks, s):
        L = []
        for t in range(2):
            L.append("ds_read_b128 %s, v%d offset:%d" % (vr(AS_[s] + 4 * t), 28 + ks, arow[t] * 128))
        L.append("ds_read_b128 %s, v%d" % (vr(AS_[s] + 8), 18 + ks))
        for jp in range(6):
            for h in range(2):
                off = ks * 6144 + h * 768 + (jp * 32 if jp < 5 else 0)
                L.append("ds_read_b64_tr_b16 %s, v%d offset:%d" % (vr(WS_[s] + jp * 4 + h * 2, 2), 20 if jp < 5 else 21, off))
        for e in range(2):
            for h in range(2):
                L.append("ds_read_b64_tr_b16 %s, v%d offset:%d" % (vr(WS_[s] + 24 + e * 4 + h * 2, 2), 22 + e, ks * 6144 + h * 768))
        return L

    def compute(ks, s):
        mf = []
        for jp in range(6):
            for t in range(2):
                mf.append(mfma(ACC + t * 24 + jp * 4, WS_[s] + jp * 4, AS_[s] + 4 * t))
        pre = []
        for t in (2, 0, 1):
            pre.append(mfma(SQ + 8 * t, ONES, AS_[s] + 4 * t))
            pre.append(mfma(SQ + 8 * t + 4, AS_[s] + 4 * t, AS_[s] + 4 * t))
        mf = pre + mf
        va = []
        tail = []
        for i in range(4):
            r = AS_[s] + 8 + i
            tail.append("v_cndmask_b32 v%d, v%d, v24, s[34:35]" % (r, r))
        return mf, va, tail + ["s_nop 1", mfma(80, WS_[s] + 24, AS_[s] + 8), mfma(84, WS_[s] + 28, AS_[s] + 8)]

    for t in range(1, 5):
        a("v_add_u32 v%d, %d, v8" % (203 + t, t * 32 * 1024))
    P.run("k1", [8, 204, 205, 206, 207], addr_regs, reads, compute)
    stats_extract(a, SQ, ST, 3)
    a("v_mov_b32 v4, %s" % f32hex(1.0 / 512))
    a("v_mov_b32 v5, %s" % f32hex(1e-5))
    for t in range(3):
        s_, q_ = ST + 2 * t, ST + 2 * t + 1
        a("v_mul_f32 v%d, v%d, v4" % (s_, s_))
        a("v_mul_f32 v%d, v%d, v4" % (q_, q_))
        a("v_fma_f32 v%d, -v%d, v%d, v%d" % (q_, s_, s_, q_))
        a("v_max_f32 v%d, 0, v%d" % (q_, q_))
        a("v_add_f32 v%d, v%d, v5" % (q_, q_))
        a("v_rsq_f32 v%d, v%d" % (q_, q_))
        a("s_nop 0")
        a("v_mul_f32 v%d, v%d, v%d" % (192 + 4 * t, s_, q_))
        a("v_mul_f32 v%d, v%d, v%d" % (193 + 4 * t, s_, q_))
        a("v_mov_b32 v%d, v%d" % (194 + 4 * t, q_))
        a("v_mov_b32 v%d, v%d" % (195 + 4 * t, q_))
    CS = 131072
    a("v_lshlrev_b32 v6, 4, v3")
    a("v_add_u32 v7, %d, v6" % CS)
    a("s_add_u32 s36, s26, 2")
    a("s_lshl_b32 s36, s36, 6")
    a("v_add_u32 v8, s36, v7")
    a("s_and_b32 s37, s26, 1")
    a("s_lshl_b32 s37, s37, 6")
    a("v_add_u32 v9, s37, v7")
    a("s_and_saveexec_b64 s[36:37], s[34:35]")
    a("ds_write_b128 v8, %s" % vr(80))
    a("ds_write_b128 v9, %s" % vr(84))
    a("s_mov_b64 exec, s[36:37]")
    a("s_waitcnt lgkmcnt(0)")
    a("s_barrier")
    for jp in range(6):
        a("ds_read_b128 %s, v7 offset:%d" % (vr(88 + jp * 4), jp * 64))
    a("ds_read_b128 %s, v8" % vr(112))
    QB, KB, VB = 0, 128 * 144, 128 * 144 + 144 * 144
    a("s_lshl_b32 s36, s26, 5")
    a("v_add_u32 v10, s36, v2")
    a("v_mul_u32_u24 v10, 144, v10")
    a("v_add_u32 v10, v10, v6")
    a("v_mul_u32_u24 v11, 144, v2")
    a("v_add_u32 v11, v11, v6")
    a("s_cmp_lt_u32 s26, 2")
    a("s_mov_b32 s37, %d" % VB)
    a("s_cselect_b32 s36, %d, s37" % KB)
    a("s_and_b32 s37, s26, 1")
    a("s_lshl_b32 s37, s37, 6")
    a("s_add_u32 s36, s36, s37")
    a("v_add_u32 v11, s36, v11")
    a("s_waitcnt lgkmcnt(0)")

    def fix_write(accb, csb, st, addr, off):
        for p in range(2):
            a("v_pk_mul_f32 %s, %s, %s" % (vr(120 + 2 * p, 2), vr(csb + 2 * p, 2), vr(192 + 4 * st, 2)))
        for p in range(2):
            a("v_pk_fma_f32 %s, %s, %s, %s neg_lo:[0,0,1] neg_hi:[0,0,1]" % (vr(accb + 2 * p, 2), vr(accb + 2 * p, 2), vr(194 + 4 * st, 2), vr(120 + 2 * p, 2)))
        a("ds_write_b128 v%d, %s offset:%d" % (addr, vr(accb), off))

    for t in range(2):
        for jp in range(6):
            regbase = [QB, KB + 16 * 144, VB + 16 * 144][jp >> 1]
            fix_write(ACC + t * 24 + jp * 4, 88 + jp * 4, t, 10, regbase + t * 16 * 144 + (jp & 1) * 64)
    fix_write(80, 112, 2, 11, 0)
    a("s_waitcnt lgkmcnt(0)")
    a("s_barrier")
    a.stamp()
    a("v_and_b32 v4, 127, v0")
    a("v_lshrrev_b32 v5, 7, v0")
    a("v_mul_u32_u24 v6, 144, v4")
    a("v_lshl_add_u32 v6, v5, 6, v6")
    for i in range(4):
        a("ds_read_b128 %s, v6 offset:%d" % (vr(8 + 4 * i), QB + 16 * i))
    for w in range(8):
        for i in range(4):
            a("ds_read_b128 %s, v6 offset:%d" % (vr(64 + 16 * w + 4 * i), KB + 16 * 144 - 288 * w + 16 * i))
        if w == 1:
            a("v_mov_b32 v40, %s" % f32hex(0.25 * LOG2E))
            a("v_mov_b32 v41, %s" % f32hex(0.25 * LOG2E))
            a("s_waitcnt lgkmcnt(8)")
            for i in range(8):
                a("v_pk_mul_f32 %s, %s, %s" % (vr(8 + 2 * i, 2), vr(8 + 2 * i, 2), vr(40, 2)))
        if w % 2 == 1:
            a("s_waitcnt lgkmcnt(0)")
            for ww in (w - 1, w):
                kb = 64 + 16 * ww
                a("v_pk_mul_f32 %s, %s, %s" % (vr(42, 2), vr(8, 2), vr(kb, 2)))
                for i in range(1, 8):
                    a("v_pk_fma_f32 %s, %s, %s, %s" % (vr(42, 2), vr(8 + 2 * i, 2), vr(kb + 2 * i, 2), vr(42, 2)))
                a("v_add_f32 v%d, v42, v43" % (24 + ww))
    for w in range(8):
        for i in range(4):
            a("ds_read_b128 %s, v6 offset:%d" % (vr(64 + 16 * w + 4 * i), VB + 16 * 144 - 288 * w + 16 * i))
        if w % 2 == 1 and w < 7:
            a("s_waitcnt lgkmcnt(0)")
    a("v_add_u32 v32, s27, v4")
    a("v_mov_b32 v33, %s" % f32hex(-1e30))
    for w in range(1, 8):
        a("v_cmp_le_u32 vcc, %d, v32" % (2 * w))
        a("s_nop 1")
        a("v_cndmask_b32 v%d, v33, v%d, vcc" % (24 + w, 24 + w))
    a("v_max3_f32 v34, v24, v25, v26")
    a("v_max3_f32 v34, v34, v27, v28")
    a("v_max3_f32 v34, v34, v29, v30")
    a("v_max_f32 v34, v34, v31")
    for w in range(8):
        a("v_sub_f32 v%d, v%d, v34" % (24 + w, 24 + w))
    for w in range(8):
        a("v_exp_f32 v%d, v%d" % (24 + w, 24 + w))
    a("s_nop 0")
    a("v_add_f32 v35, v24, v25")
    for w in range(2, 8):
        a("v_add_f32 v35, v35, v%d" % (24 + w))
    a("v_rcp_f32 v35, v35")
    a("s_nop 0")
    for w in range(8):
        a("v_mul_f32 v%d, v%d, v35" % (44 + 2 * w, 24 + w))
    a("s_waitcnt lgkmcnt(0)")
    for i in range(8):
        a("v_pk_mul_f32 %s, %s, %s op_sel_hi:[0,1]" % (vr(8 + 2 * i, 2), vr(44, 2), vr(64 + 2 * i, 2)))
    for w in range(1, 8):
        for i in range(8):
            a("v_pk_fma_f32 %s, %s, %s, %s op_sel_hi:[0,1,1]" % (vr(8 + 2 * i, 2), vr(44 + 2 * w, 2), vr(64 + 16 * w + 2 * i, 2), vr(8 + 2 * i, 2)))
    for i in range(8):
        a("v_cvt_pk_bf16_f32 v%d, v%d, v%d" % (24 + i, 8 + 2 * i, 9 + 2 * i))
    a("v_lshlrev_b32 v32, 10, v32")
    a("v_lshl_add_u32 v32, v5, 5, v32")
    a("v_add_u32 v32, s30, v32")
    a("buffer_store_dwordx4 %s, v32, s[20:23], 0 offen" % vr(24))
    a("buffer_store_dwordx4 %s, v32, s[20:23], 0 offen offset:16" % vr(28))
    a.stamp_dump()
    a.label(done)
    a("s_endpgm")
    P.loader(2)
    return name, 240, 240, 131072 + 512


def gen_k24(a, which):
    if which == 2:
        name = "k2_wo_kernel"
        K = 512
    else:
        name = "k4_w2_kernel"
        K = 1792
    kernel_head(a, name)
    done = "L_%s_done" % name
    common_prologue(a, 256, done)
    map32x8(a)
    if which == 2:
        srd(a, 12, P_WS, 2048 * 512 * 2, WS_O)
        srd(a, 16, P_WO, 512 * 512 * 2)
        srd(a, 20, P_X, 2048 * 512 * 2)
        srd(a, 36, P_WS, 2048 * 512 * 2, WS_H)
    else:
        srd(a, 12, P_WS, 2048 * 1792 * 2, WS_HID)
        srd(a, 16, P_W2, 1792 * 512 * 2)
        srd(a, 20, P_WS, 2048 * 512 * 2, WS_H)
        srd(a, 36, P_OUT, 2048 * 512 * 2)
        srd(a, 60, P_B2, 512 * 2)
    P = Pipe(a, K, 128, 4, 64, K * 2, 128, 1024, 4, 4, [9, 9, 9, 9], 32 * 1024)
    a("s_lshr_b32 s27, s26, 1")
    a("s_and_b32 s28, s26, 1")
    a("s_lshl_b32 s29, s24, 6")
    a("s_lshl_b32 s30, s26, 4")
    a("s_add_u32 s30, s30, s29")
    a("v_lshrrev_b32 v5, 3, v1")
    a("v_add_u32 v5, s30, v5")
    a("v_and_b32 v6, 7, v1")
    a("v_lshlrev_b32 v6, 4, v6")
    a("s_lshl_b32 s30, s25, 7")
    a("v_add_u32 v12, s30, v6")
    a("v_lshl_add_u32 v10, v5, 10, v12")
    a("v_add_u32 v11, 0x2000, v10")
    for p in range(2):
        a("buffer_load_dwordx4 %s, v%d, s[20:23], 0 offen" % (vr(96 + p * 4), 10 + p))
    if which == 4:
        a("buffer_load_dwordx4 %s, v12, s[60:63], 0 offen" % vr(104))
    P.a_pattern(8, 29)
    a("v_lshrrev_b32 v5, 3, v1")
    a("v_bfe_u32 v6, v1, 1, 2")
    a("v_bfe_u32 v7, v1, 4, 1")
    a("s_lshl_b32 s3, s28, 1")
    a("v_or_b32 v7, s3, v7")
    a("v_xor_b32 v6, v6, v7")
    a("v_and_b32 v7, 1, v1")
    a("v_lshlrev_b32 v7, 4, v7")
    a("v_lshl_add_u32 v7, v6, 5, v7")
    a("s_lshl_b32 s3, s26, 3")
    a("v_add_u32 v5, s3, v5")
    a("v_lshl_add_u32 v7, v5, 10, v7")
    a("s_lshl_b32 s3, s25, 7")
    a("v_add_u32 v9, s3, v7")
    P.la_pattern(13)
    a("s_mul_i32 s3, s27, %d" % (32 * 256))
    for ks in range(4):
        a("v_add_u32 v%d, s3, v%d" % (13 + ks, 13 + ks))
    a("v_lshrrev_b32 v5, 2, v2")
    a("v_and_b32 v6, 3, v2")
    a("v_lshl_add_u32 v7, v3, 3, v5")
    a("v_lshlrev_b32 v7, 7, v7")
    a("v_lshl_add_u32 v7, v6, 3, v7")
    a("v_add_u32 v7, %d, v7" % P.BOFF)
    a("v_lshrrev_b32 v5, 1, v5")
    a("v_and_b32 v6, 1, v3")
    a("v_lshl_add_u32 v5, v6, 1, v5")
    a("s_lshl_b32 s3, s28, 1")
    a("v_xor_b32 v6, s3, v5")
    a("v_lshl_add_u32 v17, v6, 5, v7")
    a("v_xor_b32 v6, 1, v6")
    a("v_lshl_add_u32 v18, v6, 5, v7")
    addr_regs = [(20 + i, 13 + i) for i in range(6)]
    ACC = 32
    WS_ = [48, 56]
    AS_ = [64, 72]
    for i in range(16):
        a("v_mov_b32 v%d, 0" % (ACC + i))
    P.init_state()

    def reads(ks, s):
        L = []
        for t in range(2):
            L.append("ds_read_b128 %s, v%d offset:%d" % (vr(AS_[s] + 4 * t), 20 + ks, t * 16 * 256))
        for j in range(2):
            for h in range(2):
                L.append("ds_read_b64_tr_b16 %s, v%d offset:%d" % (vr(WS_[s] + j * 4 + h * 2, 2), 24 + j, ks * 4096 + h * 512))
        return L

    def compute(ks, s):
        mf = []
        for t in range(2):
            for j in range(2):
                mf.append(mfma(ACC + (t * 2 + j) * 4, WS_[s] + j * 4, AS_[s] + 4 * t))
        return mf, [], []

    P.run(name, 8, addr_regs, reads, compute)
    a("s_waitcnt vmcnt(0)")
    a("s_lshl_b32 s3, s27, 5")
    a("v_add_u32 v4, s3, v2")
    a("v_mul_u32_u24 v4, 272, v4")
    a("v_lshl_add_u32 v4, v3, 4, v4")
    a("s_lshl_b32 s3, s28, 7")
    a("v_add_u32 v4, s3, v4")
    a("s_barrier")
    for t in range(2):
        for j in range(2):
            a("ds_write_b128 v4, %s offset:%d" % (vr(ACC + (t * 2 + j) * 4), t * 16 * 272 + j * 64))
    a("v_lshrrev_b32 v5, 3, v1")
    a("s_lshl_b32 s3, s26, 4")
    a("v_add_u32 v5, s3, v5")
    a("v_mul_u32_u24 v5, 272, v5")
    a("v_and_b32 v6, 7, v1")
    a("v_lshl_add_u32 v5, v6, 5, v5")
    a("s_waitcnt lgkmcnt(0)")
    a("s_barrier")
    for p in range(2):
        a("ds_read_b128 %s, v5 offset:%d" % (vr(48 + p * 8), p * 8 * 272))
        a("ds_read_b128 %s, v5 offset:%d" % (vr(52 + p * 8), p * 8 * 272 + 16))
    if which == 4:
        for i in range(4):
            a("v_lshlrev_b32 v%d, 16, v%d" % (72 + 2 * i, 104 + i))
            a("v_and_b32 v%d, 0xffff0000, v%d" % (73 + 2 * i, 104 + i))
    a("s_waitcnt lgkmcnt(0)")
    for p in range(2):
        for i in range(4):
            a("v_lshlrev_b32 v%d, 16, v%d" % (64 + 2 * i, 96 + p * 4 + i))
            a("v_and_b32 v%d, 0xffff0000, v%d" % (65 + 2 * i, 96 + p * 4 + i))
        for i in range(4):
            a("v_pk_add_f32 %s, %s, %s" % (vr(48 + p * 8 + 2 * i, 2), vr(48 + p * 8 + 2 * i, 2), vr(64 + 2 * i, 2)))
        if which == 4:
            for i in range(4):
                a("v_pk_add_f32 %s, %s, %s" % (vr(48 + p * 8 + 2 * i, 2), vr(48 + p * 8 + 2 * i, 2), vr(72 + 2 * i, 2)))
        for i in range(4):
            a("v_cvt_pk_bf16_f32 v%d, v%d, v%d" % (96 + p * 4 + i, 48 + p * 8 + 2 * i, 49 + p * 8 + 2 * i))
        a("buffer_store_dwordx4 %s, v%d, s[36:39], 0 offen" % (vr(96 + p * 4), 10 + p))
    a.stamp_dump()
    a.label(done)
    a("s_endpgm")
    P.loader(2)
    return name, 112, 112, P.BUFSZ * P.NBUF


def gen_k3(a):
    name = "k3_w1_kernel"
    kernel_head(a, name)
    done = "L_k3_done"
    common_prologue(a, 256, done)
    map16(a)
    srd(a, 12, P_WS, 2048 * 512 * 2, WS_H)
    srd(a, 16, P_W1, 512 * 1792 * 2)
    srd(a, 20, P_WS, 2048 * 1792 * 2, WS_HID)
    srd(a, 36, P_B1, 1792 * 2)
    P = Pipe(a, 512, 64, 4, 128, 1024, 224, 3584, 4, 4, [9, 10, 11, 12], 0)
    a("s_lshl_b32 s27, s24, 7")
    a("s_mul_i32 s30, s25, 224")
    a("v_lshlrev_b32 v5, 3, v3")
    a("v_add_u32 v5, s30, v5")
    for jp in range(7):
        a("buffer_load_dwordx2 %s, v5, s[36:39], 0 offen offset:%d" % (vr(200 + 2 * jp, 2), jp * 32))
    a("s_lshl_b32 s28, s26, 5")
    a("s_add_u32 s28, s28, s27")
    P.a_pattern(8, 27)
    for t in range(4):
        d = 9 + t
        a("s_lshl_b32 s3, s26, 6")
        a("s_add_u32 s3, s3, %d" % (t * 256))
        a("v_add_u32 v13, s3, v1")
        a("v_mul_u32_u24 v14, 2341, v13")
        a("v_lshrrev_b32 v14, 15, v14")
        a("v_mul_u32_u24 v15, 14, v14")
        a("v_sub_u32 v15, v13, v15")
        a("v_lshrrev_b32 v16, 1, v15")
        a("v_and_b32 v15, 1, v15")
        a("v_bfe_u32 v13, v14, 3, 1")
        a("v_lshlrev_b32 v13, 2, v13")
        a("v_sub_u32 v16, v16, v13")
        a("v_add_u32 v16, 7, v16")
        mod_wrap(a, 16, 7, 13)
        a("v_lshlrev_b32 v16, 5, v16")
        a("v_lshl_add_u32 v16, v15, 4, v16")
        a("v_mul_u32_u24 v14, 3584, v14")
        a("v_add3_u32 v%d, v14, v16, s30" % d)
    P.la_pattern(13)
    a("s_mul_i32 s3, s26, %d" % (32 * 128))
    a("v_add_u32 v13, s3, v13")
    a("v_add_u32 v14, s3, v14")
    a("v_lshrrev_b32 v5, 2, v2")
    a("v_and_b32 v6, 3, v2")
    a("v_lshl_add_u32 v5, v3, 3, v5")
    a("v_mul_u32_u24 v5, 224, v5")
    a("v_lshl_add_u32 v5, v6, 3, v5")
    a("v_add_u32 v5, %d, v5" % P.BOFF)
    a("v_and_b32 v6, 1, v3")
    a("v_lshl_add_u32 v15, v6, 7, v5")
    a("v_mul_u32_u24 v7, 96, v6")
    a("v_sub_u32 v16, v5, v7")
    a("v_lshlrev_b32 v6, 2, v6")
    a("v_add_u32 v7, s26, v6")
    mod_wrap(a, 7, 7, 17)
    a("v_lshl_add_u32 v17, v7, 5, v5")
    a("s_add_u32 s3, s26, 4")
    a("s_min_u32 s3, s3, 6")
    a("v_add_u32 v7, s3, v6")
    mod_wrap(a, 7, 7, 18)
    a("v_lshl_add_u32 v18, v7, 5, v5")
    addr_regs = [(20 + i, 13 + i) for i in range(6)]
    ACC = 32
    WS_ = [96, 132]
    AS_ = [168, 176]
    ST = 184
    SQ = 228
    for i in range(16):
        a("v_mov_b32 v%d, 0" % (SQ + i))
    a("v_mov_b32 v26, 0x3f803f80")
    for i in range(4):
        a("v_mov_b32 v%d, 0x3f803f80" % (188 + i))
    for i in range(64):
        a("v_mov_b32 v%d, 0" % (ACC + i))
    for i in range(4):
        a("v_mov_b32 v%d, 0" % (ST + i))
    P.init_state()

    def reads(ks, s):
        L = []
        for t in range(2):
            L.append("ds_read_b128 %s, v%d offset:%d" % (vr(AS_[s] + 4 * t), 20 + ks, t * 16 * 128))
        for jp in range(7):
            for h in range(2):
                L.append("ds_read_b64_tr_b16 %s, v%d offset:%d" % (vr(WS_[s] + jp * 4 + h * 2, 2), 22 if jp < 3 else 23, ks * 7168 + h * 896 + jp * 32))
        for e in range(2):
            for h in range(2):
                L.append("ds_read_b64_tr_b16 %s, v%d offset:%d" % (vr(WS_[s] + 28 + e * 4 + h * 2, 2), 24 + e, ks * 7168 + h * 896))
        return L

    def compute(ks, s):
        mf = []
        for jp in range(7):
            for t in range(2):
                mf.append(mfma(ACC + t * 28 + jp * 4, WS_[s] + jp * 4, AS_[s] + 4 * t))
        mf.append(mfma(88, WS_[s] + 28, 188))
        mf.append(mfma(92, WS_[s] + 32, 188))
        for t in range(2):
            mf.append(mfma(SQ + 8 * t, 188, AS_[s] + 4 * t))
            mf.append(mfma(SQ + 8 * t + 4, AS_[s] + 4 * t, AS_[s] + 4 * t))
        return mf, [], []

    P.run("k3", 8, addr_regs, reads, compute)
    a("s_waitcnt vmcnt(0)")
    stats_extract(a, SQ, ST, 2)
    a("v_mov_b32 v4, %s" % f32hex(1.0 / 512))
    a("v_mov_b32 v5, %s" % f32hex(1e-5))
    for t in range(2):
        s_, q_ = ST + 2 * t, ST + 2 * t + 1
        a("v_mul_f32 v%d, v%d, v4" % (s_, s_))
        a("v_mul_f32 v%d, v%d, v4" % (q_, q_))
        a("v_fma_f32 v%d, -v%d, v%d, v%d" % (q_, s_, s_, q_))
        a("v_max_f32 v%d, 0, v%d" % (q_, q_))
        a("v_add_f32 v6, v%d, v5" % q_)
        a("v_rcp_f32 v7, v6")
        a("v_rsq_f32 v6, v6")
        a("s_nop 0")
        a("v_fma_f32 v7, v%d, v7, v5" % q_)
        a("v_rsq_f32 v7, v7")
        a("s_nop 0")
        a("v_mul_f32 v%d, v6, v7" % (218 + 4 * t))
        a("v_mul_f32 v%d, v6, v7" % (219 + 4 * t))
        a("v_mul_f32 v%d, v%d, v%d" % (216 + 4 * t, s_, 218 + 4 * t))
        a("v_mul_f32 v%d, v%d, v%d" % (217 + 4 * t, s_, 218 + 4 * t))
    a.stamp()
    CS = 131072
    a("v_lshlrev_b32 v6, 4, v3")
    a("v_add_u32 v6, %d, v6" % CS)
    a("s_lshl_b32 s3, s26, 6")
    a("v_add_u32 v7, s3, v6")
    a("s_add_u32 s3, s26, 4")
    a("s_min_u32 s3, s3, 6")
    a("s_lshl_b32 s3, s3, 6")
    a("v_add_u32 v8, s3, v6")
    a("v_cmp_eq_u32 vcc, 0, v2")
    a("s_and_saveexec_b64 s[34:35], vcc")
    a("ds_write_b128 v7, %s" % vr(88))
    a("ds_write_b128 v8, %s" % vr(92))
    a("s_mov_b64 exec, s[34:35]")
    a("s_waitcnt lgkmcnt(0)")
    a("s_barrier")
    for jp in range(7):
        a("ds_read_b128 %s, v6 offset:%d" % (vr(96 + jp * 4), jp * 64))
    a("s_mul_i32 s31, s26, 7680")
    a("s_mov_b32 s32, 3584")
    a("v_mul_u32_u24 v30, 240, v2")
    a("v_lshl_add_u32 v30, v3, 3, v30")
    a("v_add_u32 v30, s31, v30")
    C0 = 0.7978845608028654
    c1 = f32hex(-2.0 * LOG2E * C0)
    c2 = f32hex(-2.0 * LOG2E * C0 * 0.044715)
    a("v_mov_b32 v224, %s" % c1)
    a("v_mov_b32 v225, %s" % c1)
    a("v_mov_b32 v226, %s" % c2)
    a("v_mov_b32 v227, %s" % c2)
    for jp in range(7):
        a("v_lshlrev_b32 v%d, 16, v%d" % (124 + 4 * jp, 200 + 2 * jp))
        a("v_and_b32 v%d, 0xffff0000, v%d" % (125 + 4 * jp, 200 + 2 * jp))
        a("v_lshlrev_b32 v%d, 16, v%d" % (126 + 4 * jp, 201 + 2 * jp))
        a("v_and_b32 v%d, 0xffff0000, v%d" % (127 + 4 * jp, 201 + 2 * jp))
    a("s_waitcnt lgkmcnt(0)")
    a.stamp()
    TB = 152
    prs = [(t, jp, p) for t in range(2) for jp in range(7) for p in range(2)]

    def A_(t, jp, p):
        return vr(ACC + t * 28 + jp * 4 + 2 * p, 2)

    def T_(t, jp, p):
        return vr(TB + t * 28 + jp * 4 + 2 * p, 2)

    for (t, jp, p) in prs:
        a("v_pk_fma_f32 %s, %s, %s, %s neg_lo:[1,0,0] neg_hi:[1,0,0]" % (T_(t, jp, p), vr(216 + 4 * t, 2), vr(96 + jp * 4 + 2 * p, 2), vr(124 + jp * 4 + 2 * p, 2)))
    for (t, jp, p) in prs:
        a("v_pk_fma_f32 %s, %s, %s, %s" % (A_(t, jp, p), A_(t, jp, p), vr(218 + 4 * t, 2), T_(t, jp, p)))
    for (t, jp, p) in prs:
        a("v_pk_mul_f32 %s, %s, %s" % (T_(t, jp, p), A_(t, jp, p), A_(t, jp, p)))
    for (t, jp, p) in prs:
        a("v_pk_fma_f32 %s, %s, %s, %s" % (T_(t, jp, p), T_(t, jp, p), vr(226, 2), vr(224, 2)))
    for (t, jp, p) in prs:
        a("v_pk_mul_f32 %s, %s, %s" % (T_(t, jp, p), T_(t, jp, p), A_(t, jp, p)))
    for i in range(56):
        a("v_exp_f32 v%d, v%d" % (TB + i, TB + i))
    for (t, jp, p) in prs:
        a("v_pk_add_f32 %s, %s, 1.0 op_sel_hi:[1,0]" % (T_(t, jp, p), T_(t, jp, p)))
    for i in range(56):
        a("v_rcp_f32 v%d, v%d" % (TB + i, TB + i))
    for (t, jp, p) in prs:
        a("v_pk_mul_f32 %s, %s, %s" % (A_(t, jp, p), A_(t, jp, p), T_(t, jp, p)))
    for t in range(2):
        for jp in range(7):
            accb = ACC + t * 28 + jp * 4
            T = TB + t * 28 + jp * 4
            a("v_cvt_pk_bf16_f32 v%d, v%d, v%d" % (T, accb, accb + 1))
            a("v_cvt_pk_bf16_f32 v%d, v%d, v%d" % (T + 1, accb + 2, accb + 3))
    for t in range(2):
        for jp in range(7):
            T = TB + t * 28 + jp * 4
            a("ds_write_b64 v30, %s offset:%d" % (vr(T, 2), t * 16 * 240 + jp * 32))
    a.stamp()
    for p in range(7):
        a("v_add_u32 v4, %d, v1" % (p * 64))
        a("v_mul_u32_u24 v5, 2341, v4")
        a("v_lshrrev_b32 v5, 15, v5")
        a("v_mul_u32_u24 v6, 14, v5")
        a("v_sub_u32 v6, v4, v6")
        a("v_lshlrev_b32 v6, 4, v6")
        a("v_mul_u32_u24 v7, 240, v5")
        a("v_add3_u32 v%d, v7, v6, s31" % (32 + p))
        a("v_add_u32 v5, s28, v5")
        a("v_mul_lo_u32 v5, v5, s32")
        a("v_add3_u32 v%d, v5, v6, s30" % (40 + p))
    a("s_waitcnt lgkmcnt(0)")
    for p in range(7):
        a("ds_read_b128 %s, v%d" % (vr(96 + 4 * p), 32 + p))
    for p in range(7):
        a("s_waitcnt lgkmcnt(%d)" % (6 - p))
        a("buffer_store_dwordx4 %s, v%d, s[20:23], 0 offen" % (vr(96 + 4 * p), 40 + p))
    a.stamp()
    a.stamp_dump()
    a.label(done)
    a("s_endpgm")
    P.loader(1)
    return name, 244, 244, 131072 + 512


def main():
    global STAMP, OUT, EXP
    if len(sys.argv) > 1 and sys.argv[1] == "stamp":
        STAMP = True
        OUT = "stamp.s"
        if len(sys.argv) > 2:
            EXP = sys.argv[2]
            OUT = "stamp_%s.s" % EXP
    a = Asm()
    ks = [gen_k1(a), gen_k24(a, 2), gen_k3(a), gen_k24(a, 4)]
    head = open("cdna_kernels/%s.s.ref" % NAME).read().split("; Override launch")[0]
    out = head
    for (name, nv, acc, lds) in ks:
        out += "; @launch kernel=%s grid=(256,1,1) block=(512,1,1) lds=%d\n" % (name, lds)
    out += '.amdgcn_target "amdgcn-amd-amdhsa--gfx950"\n.text\n'
    out += a.text()
    out += '.section .rodata,"a"\n'
    for (name, nv, acc, lds) in ks:
        out += ".p2align 6\n" + kernel_desc(name, nv, acc)
    open(OUT, "w").write(out)
    print("wrote", OUT, len(out))


if __name__ == "__main__":
    assert all((sl * 2731) >> 15 == sl // 12 for sl in range(768))
    assert all((sl * 2341) >> 15 == sl // 14 for sl in range(1024))
    main()
```

```python
import sys, struct

NAME = "sequential_preLN__sliding_local_dilated__mixer_channel_mlp__prompt"
OUT = "cdna_kernels/%s.s" % NAME

WS_O = 0
WS_H = 2 * 1024 * 1024
WS_HID = 4 * 1024 * 1024
LOG2E = 1.4426950408889634
STAMP = False
EXP = ""
STF = ""
STREG = list(range(86, 100)) + list(range(52, 60))


def f32hex(x):
    return "0x%08x" % struct.unpack("<I", struct.pack("<f", x))[0]


class Asm:
    def __init__(self):
        self.lines = []
        self.nst = 0
        self.kidx = 0

    def __call__(self, s):
        self.lines.append("    " + s)

    def label(self, s):
        self.lines.append(s + ":")

    def raw(self, s):
        self.lines.append(s)

    def text(self):
        return "\n".join(self.lines) + "\n"

    def stamp(self):
        if not STAMP:
            return
        if self.nst == 0:
            self("s_memrealtime s[100:101]")
            self("s_waitcnt lgkmcnt(0)")
            self("s_mov_b32 s%d, s100" % STREG[-1])
        self("s_memtime s[100:101]")
        self("s_waitcnt lgkmcnt(0)")
        self("s_mov_b32 s%d, s100" % STREG[self.nst])
        self.nst += 1

    def stamp_dump(self):
        if not STAMP:
            return
        self("s_waitcnt vmcnt(0)")
        self.stamp()
        n = self.nst
        self("s_cmp_lg_u32 s26, 0")
        self("s_cbranch_scc1 L_st_skip%d" % self.kidx)
        self("s_add_u32 s60, s84, %d" % (12 * 1024 * 1024 + self.kidx * 65536))
        self("s_addc_u32 s61, s85, 0")
        self("s_and_b32 s61, s61, 0xffff")
        self("s_mov_b32 s62, 65536")
        self("s_mov_b32 s63, 0x20000")
        self("s_lshl_b32 s3, s2, 7")
        self("v_mov_b32 v1, s3")
        for i in range(n):
            self("v_mov_b32 v2, s%d" % STREG[i])
            self("buffer_store_dword v2, v1, s[60:63], 0 offen offset:%d" % (4 * i))
        self("s_memrealtime s[100:101]")
        self("s_waitcnt lgkmcnt(0)")
        self("v_mov_b32 v2, s%d" % STREG[-1])
        self("buffer_store_dword v2, v1, s[60:63], 0 offen offset:120")
        self("v_mov_b32 v2, s100")
        self("buffer_store_dword v2, v1, s[60:63], 0 offen offset:124")
        self.label("L_st_skip%d" % self.kidx)
        self.nst = 0
        self.kidx += 1


def srd(a, d, ptr, nbytes, off=0):
    if off:
        a("s_add_u32 s%d, s%d, %d" % (d, ptr, off))
        a("s_addc_u32 s%d, s%d, 0" % (d + 1, ptr + 1))
        a("s_and_b32 s%d, s%d, 0xffff" % (d + 1, d + 1))
    else:
        a("s_mov_b32 s%d, s%d" % (d, ptr))
        a("s_and_b32 s%d, s%d, 0xffff" % (d + 1, ptr + 1))
    a("s_mov_b32 s%d, %d" % (d + 2, nbytes))
    a("s_mov_b32 s%d, 0x00020000" % (d + 3))


def kernel_head(a, name):
    a.raw(".globl %s" % name)
    a.raw(".p2align 8")
    a.raw(".type %s,@function" % name)
    a.label(name)


def kernel_desc(name, nvgpr, accum, nsgpr=102):
    return """.amdhsa_kernel %s
  .amdhsa_next_free_vgpr %d
  .amdhsa_next_free_sgpr %d
  .amdhsa_accum_offset %d
  .amdhsa_group_segment_fixed_size 0
  .amdhsa_kernarg_size 88
  .amdhsa_user_sgpr_count 2
  .amdhsa_user_sgpr_kernarg_segment_ptr 1
  .amdhsa_system_sgpr_workgroup_id_x 1
.end_amdhsa_kernel
""" % (name, nvgpr, nsgpr, accum)


def vr(b, n=4):
    return "v[%d:%d]" % (b, b + n - 1)


P_X, P_WQKV, P_WO, P_W1, P_B1, P_W2, P_B2, P_OUT, P_WS = 64, 66, 68, 72, 74, 76, 78, 80, 84


def common_prologue(a, nwg, done):
    if "half" in EXP:
        nwg = 128
    if "quarter" in EXP:
        nwg = 64
    a("s_cmp_ge_u32 s2, %d" % nwg)
    a("s_cbranch_scc1 %s" % done)
    a("s_load_dwordx16 s[64:79], s[0:1], 0")
    a("s_load_dwordx4 s[80:83], s[0:1], 64")
    a("s_load_dwordx2 s[84:85], s[0:1], 80")
    a("v_and_b32 v1, 63, v0")
    a("v_lshrrev_b32 v4, 6, v0")
    a("v_and_b32 v2, 15, v0")
    a("v_bfe_u32 v3, v0, 4, 2")
    a("v_readfirstlane_b32 s26, v4")
    a("s_waitcnt lgkmcnt(0)")
    a("s_lshr_b32 s51, s26, 2")
    a("s_and_b32 s26, s26, 3")
    a.stamp()


def map16(a):
    a("s_bfe_u32 s24, s2, 0x20001")
    a("s_lshl_b32 s24, s24, 2")
    a("s_lshr_b32 s25, s2, 6")
    a("s_add_u32 s24, s24, s25")
    a("s_and_b32 s25, s2, 1")
    a("s_lshl_b32 s25, s25, 3")
    a("s_bfe_u32 s3, s2, 0x30003")
    a("s_add_u32 s25, s25, s3")


def map32x8(a):
    a("s_and_b32 s24, s2, 7")
    a("s_lshl_b32 s24, s24, 2")
    a("s_lshr_b32 s25, s2, 6")
    a("s_add_u32 s24, s24, s25")
    a("s_bfe_u32 s25, s2, 0x30003")


def merge3(mf, rd, va, tail):
    out = []
    if "novalu" in EXP:
        va = []
    if "nord" in EXP:
        rd = []
    if "nomf" in EXP:
        mf = ["s_nop 0"]
        tail = []
    if "trhalf" in EXP:
        rd = [r for i, r in enumerate(rd) if "tr" not in r or i % 2 == 0]
    if "nob128" in EXP:
        rd = [r for r in rd if "b128" not in r]
    n = len(mf)
    ri = vi = 0
    for i, m in enumerate(mf):
        out.append(m)
        rt = (len(rd) * (i + 1) + n - 1) // n
        vt = (len(va) * (i + 1) + n - 1) // n
        while ri < rt:
            out.append(rd[ri]); ri += 1
        while vi < vt:
            out.append(va[vi]); vi += 1
    out += rd[ri:] + va[vi:] + tail
    return out


def interleave(mf, va, lead=0):
    out = []
    n = len(mf)
    per = -(-len(va) // max(n, 1))
    vi = 0
    for i, m in enumerate(mf):
        out.append(m)
        for _ in range(per):
            if vi < len(va):
                out.append(va[vi])
                vi += 1
    out += va[vi:]
    return out


class Pipe:
    def __init__(self, a, K, KC, NBUF, RA, A_RS, BROW, B_RS, nA, nB, BPAT, bt_adv):
        self.a = a
        self.K, self.KC, self.NBUF = K, KC, NBUF
        self.NC = K // KC
        self.KSC = KC // 32
        self.AROW = KC * 2
        self.RA, self.A_RS, self.BROW, self.B_RS = RA, A_RS, BROW, B_RS
        self.nA, self.nB = nA, nB
        self.BOFF = nA * 4 * 1024
        self.BUFSZ = (nA + nB) * 4 * 1024
        self.BPAT = BPAT
        self.bt_adv = bt_adv
        self.rows_per_instr = 1024 // self.AROW
        self.ND = nA + nB

    def a_pattern(self, dst, rowbase_s):
        a = self.a
        rpi = self.rows_per_instr
        if rpi == 8:
            a("v_lshrrev_b32 v5, 3, v1")
            a("v_and_b32 v6, 7, v1")
            a("s_lshl_b32 s3, s26, 2")
            a("v_lshrrev_b32 v7, 1, v5")
            a("v_add_u32 v7, s3, v7")
            a("v_and_b32 v7, 7, v7")
        else:
            a("v_lshrrev_b32 v5, 4, v1")
            a("v_and_b32 v6, 15, v1")
            a("s_lshl_b32 s3, s26, 2")
            a("v_add_u32 v7, s3, v5")
        a("v_xor_b32 v6, v6, v7")
        a("s_mul_i32 s3, s26, %d" % rpi)
        a("s_add_u32 s3, s3, s%d" % rowbase_s)
        a("v_add_u32 v5, s3, v5")
        a("s_mov_b32 s3, %d" % self.A_RS)
        a("v_mul_lo_u32 v5, v5, s3")
        a("v_lshl_add_u32 v%d, v6, 4, v5" % dst)

    def la_pattern(self, dst):
        a = self.a
        if self.rows_per_instr == 8:
            a("v_lshrrev_b32 v5, 1, v2")
        else:
            a("v_mov_b32 v5, v2")
        a("v_mul_u32_u24 v6, %d, v2" % self.AROW)
        for ks in range(self.KSC):
            a("v_add_u32 v7, %d, v3" % (4 * ks))
            a("v_xor_b32 v7, v7, v5")
            a("v_lshl_add_u32 v%d, v7, 4, v6" % (dst + ks))

    def role_branch(self, name, APAT):
        self.name, self.APAT = name, APAT
        self.init_state()
        self.a("s_cmp_lg_u32 s51, 0")
        self.a("s_cbranch_scc1 L_%s_loader" % name)

    def init_state(self):
        a = self.a
        a("s_mov_b32 s40, 0")
        a("s_mov_b32 s41, 0")
        a("s_mov_b32 s42, 0")
        a("s_mov_b32 s43, 0")
        a("s_mov_b32 s44, 0")
        a("s_lshl_b32 s46, s26, 10")

    def dma(self, pat, srd_, so):
        if "contig" in EXP:
            self.cnt = getattr(self, "cnt", 0) + 1
            self.a("s_lshl_b32 s49, s40, 15")
            self.a("s_add_u32 s49, s49, %d" % ((self.cnt % 32) * 4096 % 262144))
            self.a("s_lshl_b32 s50, s2, 11")
            self.a("s_add_u32 s49, s49, s50")
            self.a("v_lshlrev_b32 v5, 4, v0")
            self.a("buffer_load_dwordx4 v5, s[%d:%d], s49 offen lds" % (srd_, srd_ + 3))
        elif "vgpr" in EXP:
            self.rot = (getattr(self, "rot", 0) + 1) % 8
            self.a("buffer_load_dwordx4 %s, v%d, s[%d:%d], s%d offen" % (vr(64 + 4 * self.rot), pat, srd_, srd_ + 3, so))
        else:
            self.a("buffer_load_dwordx4 v%d, s[%d:%d], s%d offen lds" % (pat, srd_, srd_ + 3, so))

    def issue_chunk(self, APAT):
        a = self.a
        a("s_add_u32 s47, s41, s46")
        for t in range(self.nA):
            a("s_add_u32 m0, s47, %d" % (t * 4096))
            if isinstance(APAT, list):
                a("s_nop 0")
                self.dma(APAT[t], 12, 42)
            else:
                a("s_add_u32 s48, s42, %d" % (t * 4 * self.rows_per_instr * self.A_RS))
                self.dma(APAT, 12, 48)
        for t in range(self.nB):
            a("s_add_u32 m0, s47, %d" % (self.BOFF + t * 4096))
            a("s_add_u32 s48, s43, %d" % (t * self.bt_adv))
            self.dma(self.BPAT[t], 16, 48)
        a("s_add_u32 s41, s41, %d" % self.BUFSZ)
        a("s_cmp_ge_u32 s41, %d" % (self.BUFSZ * self.NBUF))
        a("s_cselect_b32 s41, 0, s41")
        a("s_add_u32 s42, s42, %d" % (self.KC * 2))
        a("s_add_u32 s43, s43, %d" % (self.KC * self.B_RS))

    def run(self, name, APAT, addr_regs, reads, compute):
        a = self.a
        NB, NC, KSC, ND = self.NBUF, self.NC, self.KSC, self.ND
        for (cur, base) in addr_regs:
            a("v_mov_b32 v%d, v%d" % (cur, base))
        a.stamp()
        a("s_barrier")
        a.stamp()
        for l in reads(0, 0):
            a(l)
        a("s_waitcnt lgkmcnt(0)")
        a.label("L_%s_loop" % name)
        for ks in range(KSC - 1):
            mf, va, tail = compute(ks, ks & 1)
            for l in merge3(mf, reads(ks + 1, (ks + 1) & 1), va, tail):
                a(l)
            a("s_waitcnt lgkmcnt(0)")
        a("s_barrier")
        a("s_add_u32 s44, s44, %d" % self.BUFSZ)
        a("s_cmp_ge_u32 s44, %d" % (self.BUFSZ * NB))
        a("s_cselect_b32 s44, 0, s44")
        for (cur, base) in addr_regs:
            a("v_add_u32 v%d, s44, v%d" % (cur, base))
        mf, va, tail = compute(KSC - 1, (KSC - 1) & 1)
        for l in merge3(mf, reads(0, 0), va, tail):
            a(l)
        a("s_waitcnt lgkmcnt(0)")
        a("s_add_u32 s40, s40, 1")
        a("s_cmp_lt_u32 s40, %d" % NC)
        a("s_cbranch_scc1 L_%s_loop" % name)
        a("s_nop 7")
        a("s_nop 7")
        a.stamp()

    def loader(self, n_epi_barriers, extra=None):
        a = self.a
        name, APAT = self.name, self.APAT
        NB, NC, KSC, ND = self.NBUF, self.NC, self.KSC, self.ND
        a.label("L_%s_loader" % name)
        for c in range(2):
            self.issue_chunk(APAT)
        a("s_waitcnt vmcnt(%d)" % ND)
        a("s_barrier")
        for c in range(2, NB):
            self.issue_chunk(APAT)
        a.label("L_%s_lloop" % name)
        a("s_cmp_lt_u32 s40, %d" % (NC - NB + 1))
        a("s_cbranch_scc1 L_%s_wfull" % name)
        for r in range(NB - 3, -1, -1):
            if NC - 2 - r >= 0:
                a("s_cmp_eq_u32 s40, %d" % (NC - 2 - r))
                a("s_cbranch_scc0 L_%s_w%d" % (name, r))
                a("s_waitcnt vmcnt(%d)" % (ND * r))
                a("s_branch L_%s_wdone" % name)
                a.label("L_%s_w%d" % (name, r))
        a("s_waitcnt vmcnt(0)")
        a("s_branch L_%s_wdone" % name)
        a.label("L_%s_wfull" % name)
        a("s_waitcnt vmcnt(%d)" % (ND * (NB - 2)))
        a.label("L_%s_wdone" % name)
        a("s_barrier")
        a("s_cmp_lt_u32 s40, %d" % (NC - NB))
        a("s_cbranch_scc0 L_%s_noissue" % name)
        self.issue_chunk(APAT)
        a.label("L_%s_noissue" % name)
        a("s_add_u32 s40, s40, 1")
        a("s_cmp_lt_u32 s40, %d" % NC)
        a("s_cbranch_scc1 L_%s_lloop" % name)
        if extra:
            extra()
        for i in range(n_epi_barriers):
            a("s_barrier")
        a("s_endpgm")


def mfma(d, A, B):
    return "v_mfma_f32_16x16x32_bf16 %s, %s, %s, %s" % (vr(d), vr(A), vr(B), vr(d))


def reduce_groups(a, regs, tmp, addr16, addr32):
    for addr in (addr16, addr32):
        for i, r in enumerate(regs):
            a("ds_bpermute_b32 v%d, v%d, v%d" % (tmp + i, addr, r))
        a("s_waitcnt lgkmcnt(0)")
        for i, r in enumerate(regs):
            a("v_add_f32 v%d, v%d, v%d" % (r, r, tmp + i))


def stats_extract(a, SQ, ST, nt):
    a("v_and_b32 v4, 3, v2")
    a("v_cmp_eq_u32 s[36:37], 1, v4")
    a("v_cmp_eq_u32 s[38:39], 2, v4")
    a("v_cmp_eq_u32 vcc, 3, v4")
    a("v_lshrrev_b32 v4, 2, v2")
    a("v_lshl_add_u32 v4, v4, 4, v2")
    a("v_lshlrev_b32 v4, 2, v4")
    for t in range(nt):
        g = SQ + 8 * t + 4
        a("v_cndmask_b32 v%d, v%d, v%d, s[36:37]" % (g, g, g + 1))
        a("v_cndmask_b32 v%d, v%d, v%d, s[38:39]" % (g, g, g + 2))
        a("v_cndmask_b32 v%d, v%d, v%d, vcc" % (g, g, g + 3))
        a("ds_bpermute_b32 v%d, v4, v%d" % (ST + 2 * t + 1, g))
        a("v_mov_b32 v%d, v%d" % (ST + 2 * t, SQ + 8 * t))
    a("s_waitcnt lgkmcnt(0)")


def mod_wrap(a, v, m, tmp):
    a("v_subrev_u32 v%d, %d, v%d" % (tmp, m, v))
    a("v_min_u32 v%d, v%d, v%d" % (v, v, tmp))


def gen_k1(a):
    name = "k1_qkv_attn_kernel"
    kernel_head(a, name)
    done = "L_k1_done"
    common_prologue(a, 256, done)
    map16(a)
    srd(a, 12, P_X, 2048 * 512 * 2)
    srd(a, 16, P_WQKV, 512 * 1536 * 2)
    srd(a, 20, P_WS, 2048 * 512 * 2, WS_O)
    P = Pipe(a, 512, 64, 4, 160, 1024, 192, 3072, 5, 3, [9, 10, 11], 0)
    a("s_lshl_b32 s27, s24, 7")
    a("s_sub_u32 s28, s27, 16")
    a("s_lshl_b32 s30, s25, 6")
    P.a_pattern(8, 28)
    for t in range(3):
        d = 9 + t
        a("s_lshl_b32 s3, s26, 6")
        a("s_add_u32 s3, s3, %d" % (t * 256))
        a("v_add_u32 v12, s3, v1")
        a("v_mul_u32_u24 v13, 2731, v12")
        a("v_lshrrev_b32 v13, 15, v13")
        a("v_mul_u32_u24 v14, 12, v13")
        a("v_sub_u32 v14, v12, v14")
        a("v_lshrrev_b32 v15, 1, v14")
        a("v_and_b32 v14, 1, v14")
        a("v_bfe_u32 v16, v13, 3, 1")
        a("v_sub_u32 v15, v15, v16")
        a("v_add_u32 v15, 6, v15")
        mod_wrap(a, 15, 6, 16)
        a("v_lshrrev_b32 v16, 1, v15")
        a("v_and_b32 v15, 1, v15")
        a("v_lshlrev_b32 v15, 5, v15")
        a("v_lshl_add_u32 v15, v14, 4, v15")
        a("v_lshl_add_u32 v15, v16, 10, v15")
        a("v_mul_u32_u24 v13, 3072, v13")
        a("v_add3_u32 v%d, v13, v15, s30" % d)
    for t in range(1, 5):
        a("v_add_u32 v%d, %d, v8" % (203 + t, t * 32 * 1024))
    P.role_branch("k1", [8, 204, 205, 206, 207])
    P.la_pattern(12)
    a("v_lshrrev_b32 v5, 2, v2")
    a("v_and_b32 v6, 3, v2")
    a("v_lshl_add_u32 v5, v3, 3, v5")
    a("v_mul_u32_u24 v5, 192, v5")
    a("v_lshl_add_u32 v5, v6, 3, v5")
    a("v_add_u32 v5, %d, v5" % P.BOFF)
    a("v_and_b32 v6, 1, v3")
    a("v_lshl_add_u32 v14, v6, 5, v5")
    a("v_mul_u32_u24 v7, 160, v6")
    a("v_sub_u32 v15, 160, v7")
    a("v_add_u32 v15, v15, v5")
    a("s_add_u32 s3, s26, 2")
    a("v_add_u32 v7, s3, v6")
    mod_wrap(a, 7, 6, 16)
    a("v_lshl_add_u32 v16, v7, 5, v5")
    a("s_and_b32 s3, s26, 1")
    a("v_add_u32 v7, s3, v6")
    a("v_lshl_add_u32 v17, v7, 5, v5")
    addr_regs = [(18, 12), (19, 13), (20, 14), (21, 15), (22, 16), (23, 17)]
    ACC = 32
    WS_ = [88, 120]
    AS_ = [152, 164]
    ST = 176
    SQ = 208
    ONES = 232
    for i in range(24):
        a("v_mov_b32 v%d, 0" % (SQ + i))
    for i in range(4):
        a("v_mov_b32 v%d, 0x3f803f80" % (ONES + i))
    a("v_mov_b32 v24, 0x3f803f80")
    a("v_cmp_eq_u32 s[34:35], 0, v2")
    for i in range(56):
        a("v_mov_b32 v%d, 0" % (ACC + i))
    for i in range(6):
        a("v_mov_b32 v%d, 0" % (ST + i))
    arow = [16, 32, 0]
    a("s_mul_i32 s3, s26, %d" % (32 * 128))
    a("v_add_u32 v25, s3, v12")
    a("v_add_u32 v26, s3, v13")
    addr_regs += [(28, 25), (29, 26)]

    def reads(ks, s):
        L = []
        for t in range(2):
            L.append("ds_read_b128 %s, v%d offset:%d" % (vr(AS_[s] + 4 * t), 28 + ks, arow[t] * 128))
        L.append("ds_read_b128 %s, v%d" % (vr(AS_[s] + 8), 18 + ks))
        for jp in range(6):
            for h in range(2):
                off = ks * 6144 + h * 768 + (jp * 32 if jp < 5 else 0)
                L.append("ds_read_b64_tr_b16 %s, v%d offset:%d" % (vr(WS_[s] + jp * 4 + h * 2, 2), 20 if jp < 5 else 21, off))
        for e in range(2):
            for h in range(2):
                L.append("ds_read_b64_tr_b16 %s, v%d offset:%d" % (vr(WS_[s] + 24 + e * 4 + h * 2, 2), 22 + e, ks * 6144 + h * 768))
        return L

    def compute(ks, s):
        mf = []
        for jp in range(6):
            for t in range(2):
                mf.append(mfma(ACC + t * 24 + jp * 4, WS_[s] + jp * 4, AS_[s] + 4 * t))
        pre = []
        for t in (2, 0, 1):
            pre.append(mfma(SQ + 8 * t, ONES, AS_[s] + 4 * t))
            pre.append(mfma(SQ + 8 * t + 4, AS_[s] + 4 * t, AS_[s] + 4 * t))
        mf = pre + mf
        va = []
        tail = []
        for i in range(4):
            r = AS_[s] + 8 + i
            tail.append("v_cndmask_b32 v%d, v%d, v24, s[34:35]" % (r, r))
        return mf, va, tail + ["s_nop 1", mfma(80, WS_[s] + 24, AS_[s] + 8), mfma(84, WS_[s] + 28, AS_[s] + 8)]

    P.run("k1", [8, 204, 205, 206, 207], addr_regs, reads, compute)
    stats_extract(a, SQ, ST, 3)
    a("v_mov_b32 v4, %s" % f32hex(1.0 / 512))
    a("v_mov_b32 v5, %s" % f32hex(1e-5))
    for t in range(3):
        s_, q_ = ST + 2 * t, ST + 2 * t + 1
        a("v_mul_f32 v%d, v%d, v4" % (s_, s_))
        a("v_mul_f32 v%d, v%d, v4" % (q_, q_))
        a("v_fma_f32 v%d, -v%d, v%d, v%d" % (q_, s_, s_, q_))
        a("v_max_f32 v%d, 0, v%d" % (q_, q_))
        a("v_add_f32 v%d, v%d, v5" % (q_, q_))
        a("v_rsq_f32 v%d, v%d" % (q_, q_))
        a("s_nop 0")
        a("v_mul_f32 v%d, v%d, v%d" % (192 + 4 * t, s_, q_))
        a("v_mul_f32 v%d, v%d, v%d" % (193 + 4 * t, s_, q_))
        a("v_mov_b32 v%d, v%d" % (194 + 4 * t, q_))
        a("v_mov_b32 v%d, v%d" % (195 + 4 * t, q_))
    CS = 131072
    a("v_lshlrev_b32 v6, 4, v3")
    a("v_add_u32 v7, %d, v6" % CS)
    a("s_add_u32 s36, s26, 2")
    a("s_lshl_b32 s36, s36, 6")
    a("v_add_u32 v8, s36, v7")
    a("s_and_b32 s37, s26, 1")
    a("s_lshl_b32 s37, s37, 6")
    a("v_add_u32 v9, s37, v7")
    a("s_and_saveexec_b64 s[36:37], s[34:35]")
    a("ds_write_b128 v8, %s" % vr(80))
    a("ds_write_b128 v9, %s" % vr(84))
    a("s_mov_b64 exec, s[36:37]")
    a("s_waitcnt lgkmcnt(0)")
    a("s_barrier")
    for jp in range(6):
        a("ds_read_b128 %s, v7 offset:%d" % (vr(88 + jp * 4), jp * 64))
    a("ds_read_b128 %s, v8" % vr(112))
    QB, KB, VB = 0, 128 * 144, 128 * 144 + 144 * 144
    a("s_lshl_b32 s36, s26, 5")
    a("v_add_u32 v10, s36, v2")
    a("v_mul_u32_u24 v10, 144, v10")
    a("v_add_u32 v10, v10, v6")
    a("v_mul_u32_u24 v11, 144, v2")
    a("v_add_u32 v11, v11, v6")
    a("s_cmp_lt_u32 s26, 2")
    a("s_mov_b32 s37, %d" % VB)
    a("s_cselect_b32 s36, %d, s37" % KB)
    a("s_and_b32 s37, s26, 1")
    a("s_lshl_b32 s37, s37, 6")
    a("s_add_u32 s36, s36, s37")
    a("v_add_u32 v11, s36, v11")
    a("s_waitcnt lgkmcnt(0)")

    def fix_write(accb, csb, st, addr, off):
        for p in range(2):
            a("v_pk_mul_f32 %s, %s, %s" % (vr(120 + 2 * p, 2), vr(csb + 2 * p, 2), vr(192 + 4 * st, 2)))
        for p in range(2):
            a("v_pk_fma_f32 %s, %s, %s, %s neg_lo:[0,0,1] neg_hi:[0,0,1]" % (vr(accb + 2 * p, 2), vr(accb + 2 * p, 2), vr(194 + 4 * st, 2), vr(120 + 2 * p, 2)))
        a("ds_write_b128 v%d, %s offset:%d" % (addr, vr(accb), off))

    for t in range(2):
        for jp in range(6):
            regbase = [QB, KB + 16 * 144, VB + 16 * 144][jp >> 1]
            fix_write(ACC + t * 24 + jp * 4, 88 + jp * 4, t, 10, regbase + t * 16 * 144 + (jp & 1) * 64)
    fix_write(80, 112, 2, 11, 0)
    a("s_waitcnt lgkmcnt(0)")
    a("s_barrier")
    a.stamp()
    a("v_and_b32 v4, 127, v0")
    a("v_lshrrev_b32 v5, 7, v0")
    a("v_mul_u32_u24 v6, 144, v4")
    a("v_lshl_add_u32 v6, v5, 6, v6")
    for i in range(4):
        a("ds_read_b128 %s, v6 offset:%d" % (vr(8 + 4 * i), QB + 16 * i))
    for w in range(8):
        for i in range(4):
            a("ds_read_b128 %s, v6 offset:%d" % (vr(64 + 16 * w + 4 * i), KB + 16 * 144 - 288 * w + 16 * i))
        if w == 1:
            a("v_mov_b32 v40, %s" % f32hex(0.25 * LOG2E))
            a("v_mov_b32 v41, %s" % f32hex(0.25 * LOG2E))
            a("s_waitcnt lgkmcnt(8)")
            for i in range(8):
                a("v_pk_mul_f32 %s, %s, %s" % (vr(8 + 2 * i, 2), vr(8 + 2 * i, 2), vr(40, 2)))
        if w % 2 == 1:
            a("s_waitcnt lgkmcnt(0)")
            for ww in (w - 1, w):
                kb = 64 + 16 * ww
                a("v_pk_mul_f32 %s, %s, %s" % (vr(42, 2), vr(8, 2), vr(kb, 2)))
                for i in range(1, 8):
                    a("v_pk_fma_f32 %s, %s, %s, %s" % (vr(42, 2), vr(8 + 2 * i, 2), vr(kb + 2 * i, 2), vr(42, 2)))
                a("v_add_f32 v%d, v42, v43" % (24 + ww))
    for w in range(8):
        for i in range(4):
            a("ds_read_b128 %s, v6 offset:%d" % (vr(64 + 16 * w + 4 * i), VB + 16 * 144 - 288 * w + 16 * i))
        if w % 2 == 1 and w < 7:
            a("s_waitcnt lgkmcnt(0)")
    a("v_add_u32 v32, s27, v4")
    a("v_mov_b32 v33, %s" % f32hex(-1e30))
    for w in range(1, 8):
        a("v_cmp_le_u32 vcc, %d, v32" % (2 * w))
        a("s_nop 1")
        a("v_cndmask_b32 v%d, v33, v%d, vcc" % (24 + w, 24 + w))
    a("v_max3_f32 v34, v24, v25, v26")
    a("v_max3_f32 v34, v34, v27, v28")
    a("v_max3_f32 v34, v34, v29, v30")
    a("v_max_f32 v34, v34, v31")
    for w in range(8):
        a("v_sub_f32 v%d, v%d, v34" % (24 + w, 24 + w))
    for w in range(8):
        a("v_exp_f32 v%d, v%d" % (24 + w, 24 + w))
    a("s_nop 0")
    a("v_add_f32 v35, v24, v25")
    for w in range(2, 8):
        a("v_add_f32 v35, v35, v%d" % (24 + w))
    a("v_rcp_f32 v35, v35")
    a("s_nop 0")
    for w in range(8):
        a("v_mul_f32 v%d, v%d, v35" % (44 + 2 * w, 24 + w))
    a("s_waitcnt lgkmcnt(0)")
    for i in range(8):
        a("v_pk_mul_f32 %s, %s, %s op_sel_hi:[0,1]" % (vr(8 + 2 * i, 2), vr(44, 2), vr(64 + 2 * i, 2)))
    for w in range(1, 8):
        for i in range(8):
            a("v_pk_fma_f32 %s, %s, %s, %s op_sel_hi:[0,1,1]" % (vr(8 + 2 * i, 2), vr(44 + 2 * w, 2), vr(64 + 16 * w + 2 * i, 2), vr(8 + 2 * i, 2)))
    for i in range(8):
        a("v_cvt_pk_bf16_f32 v%d, v%d, v%d" % (24 + i, 8 + 2 * i, 9 + 2 * i))
    a("v_lshlrev_b32 v32, 10, v32")
    a("v_lshl_add_u32 v32, v5, 5, v32")
    a("v_add_u32 v32, s30, v32")
    a("buffer_store_dwordx4 %s, v32, s[20:23], 0 offen%s" % (vr(24), STF))
    a("buffer_store_dwordx4 %s, v32, s[20:23], 0 offen offset:16%s" % (vr(28), STF))
    a.stamp_dump()
    a.label(done)
    a("s_endpgm")
    def prefetch():
        srd(a, 52, P_WO, 512 * 512 * 2)
        a("v_lshlrev_b32 v4, 4, v1")
        a("s_lshl_b32 s3, s2, 11")
        a("s_lshl_b32 s56, s26, 9")
        a("s_add_u32 s3, s3, s56")
        a("v_and_b32 v5, 0x1ff, v4")
        a("buffer_load_dwordx4 %s, v5, s[52:55], s3 offen" % vr(64))
        srd(a, 52, P_W1, 512 * 1792 * 2)
        srd(a, 56, P_W2, 512 * 1792 * 2)
        a("s_mul_i32 s3, s2, 7168")
        a("s_mul_i32 s60, s26, 1792")
        a("s_add_u32 s3, s3, s60")
        a("buffer_load_dwordx4 %s, v4, s[52:55], s3 offen" % vr(68))
        a("buffer_load_dwordx4 %s, v4, s[52:55], s3 offen offset:768" % vr(72))
        a("buffer_load_dwordx4 %s, v4, s[56:59], s3 offen" % vr(76))
        a("buffer_load_dwordx4 %s, v4, s[56:59], s3 offen offset:768" % vr(80))
    P.loader(2, prefetch if "nopf" not in EXP else None)
    return name, 240, 240, 131072 + 512


def gen_k24(a, which):
    if which == 2:
        name = "k2_wo_kernel"
        K = 512
    else:
        name = "k4_w2_kernel"
        K = 1792
    kernel_head(a, name)
    done = "L_%s_done" % name
    common_prologue(a, 256, done)
    map32x8(a)
    if which == 2:
        srd(a, 12, P_WS, 2048 * 512 * 2, WS_O)
        srd(a, 16, P_WO, 512 * 512 * 2)
        srd(a, 20, P_X, 2048 * 512 * 2)
        srd(a, 36, P_WS, 2048 * 512 * 2, WS_H)
    else:
        srd(a, 12, P_WS, 2048 * 1792 * 2, WS_HID)
        srd(a, 16, P_W2, 1792 * 512 * 2)
        srd(a, 20, P_WS, 2048 * 512 * 2, WS_H)
        srd(a, 36, P_OUT, 2048 * 512 * 2)
        srd(a, 60, P_B2, 512 * 2)
    P = Pipe(a, K, 128, 4, 64, K * 2, 128, 1024, 4, 4, [9, 9, 9, 9], 32 * 1024)
    a("s_lshr_b32 s27, s26, 1")
    a("s_and_b32 s28, s26, 1")
    a("s_lshl_b32 s29, s24, 6")
    P.a_pattern(8, 29)
    a("v_lshrrev_b32 v5, 3, v1")
    a("v_bfe_u32 v6, v1, 1, 2")
    a("v_bfe_u32 v7, v1, 4, 1")
    a("s_lshl_b32 s3, s28, 1")
    a("v_or_b32 v7, s3, v7")
    a("v_xor_b32 v6, v6, v7")
    a("v_and_b32 v7, 1, v1")
    a("v_lshlrev_b32 v7, 4, v7")
    a("v_lshl_add_u32 v7, v6, 5, v7")
    a("s_lshl_b32 s3, s26, 3")
    a("v_add_u32 v5, s3, v5")
    a("v_lshl_add_u32 v7, v5, 10, v7")
    a("s_lshl_b32 s3, s25, 7")
    a("v_add_u32 v9, s3, v7")
    P.role_branch(name, 8)
    a("s_lshl_b32 s30, s26, 4")
    a("s_add_u32 s30, s30, s29")
    a("v_lshrrev_b32 v5, 3, v1")
    a("v_add_u32 v5, s30, v5")
    a("v_and_b32 v6, 7, v1")
    a("v_lshlrev_b32 v6, 4, v6")
    a("s_lshl_b32 s30, s25, 7")
    a("v_add_u32 v12, s30, v6")
    a("v_lshl_add_u32 v10, v5, 10, v12")
    a("v_add_u32 v11, 0x2000, v10")
    for p in range(2):
        a("buffer_load_dwordx4 %s, v%d, s[20:23], 0 offen" % (vr(96 + p * 4), 10 + p))
    if which == 4:
        a("buffer_load_dwordx4 %s, v12, s[60:63], 0 offen" % vr(104))
    P.la_pattern(13)
    a("s_mul_i32 s3, s27, %d" % (32 * 256))
    for ks in range(4):
        a("v_add_u32 v%d, s3, v%d" % (13 + ks, 13 + ks))
    a("v_lshrrev_b32 v5, 2, v2")
    a("v_and_b32 v6, 3, v2")
    a("v_lshl_add_u32 v7, v3, 3, v5")
    a("v_lshlrev_b32 v7, 7, v7")
    a("v_lshl_add_u32 v7, v6, 3, v7")
    a("v_add_u32 v7, %d, v7" % P.BOFF)
    a("v_lshrrev_b32 v5, 1, v5")
    a("v_and_b32 v6, 1, v3")
    a("v_lshl_add_u32 v5, v6, 1, v5")
    a("s_lshl_b32 s3, s28, 1")
    a("v_xor_b32 v6, s3, v5")
    a("v_lshl_add_u32 v17, v6, 5, v7")
    a("v_xor_b32 v6, 1, v6")
    a("v_lshl_add_u32 v18, v6, 5, v7")
    addr_regs = [(20 + i, 13 + i) for i in range(6)]
    ACC = 32
    WS_ = [48, 56]
    AS_ = [64, 72]
    for i in range(16):
        a("v_mov_b32 v%d, 0" % (ACC + i))

    def reads(ks, s):
        L = []
        for t in range(2):
            L.append("ds_read_b128 %s, v%d offset:%d" % (vr(AS_[s] + 4 * t), 20 + ks, t * 16 * 256))
        for j in range(2):
            for h in range(2):
                L.append("ds_read_b64_tr_b16 %s, v%d offset:%d" % (vr(WS_[s] + j * 4 + h * 2, 2), 24 + j, ks * 4096 + h * 512))
        return L

    def compute(ks, s):
        mf = []
        for t in range(2):
            for j in range(2):
                mf.append(mfma(ACC + (t * 2 + j) * 4, WS_[s] + j * 4, AS_[s] + 4 * t))
        return mf, [], []

    P.run(name, 8, addr_regs, reads, compute)
    a("s_waitcnt vmcnt(0)")
    a("s_lshl_b32 s3, s27, 5")
    a("v_add_u32 v4, s3, v2")
    a("v_mul_u32_u24 v4, 272, v4")
    a("v_lshl_add_u32 v4, v3, 4, v4")
    a("s_lshl_b32 s3, s28, 7")
    a("v_add_u32 v4, s3, v4")
    a("s_barrier")
    for t in range(2):
        for j in range(2):
            a("ds_write_b128 v4, %s offset:%d" % (vr(ACC + (t * 2 + j) * 4), t * 16 * 272 + j * 64))
    a("v_lshrrev_b32 v5, 3, v1")
    a("s_lshl_b32 s3, s26, 4")
    a("v_add_u32 v5, s3, v5")
    a("v_mul_u32_u24 v5, 272, v5")
    a("v_and_b32 v6, 7, v1")
    a("v_lshl_add_u32 v5, v6, 5, v5")
    a("s_waitcnt lgkmcnt(0)")
    a("s_barrier")
    for p in range(2):
        a("ds_read_b128 %s, v5 offset:%d" % (vr(48 + p * 8), p * 8 * 272))
        a("ds_read_b128 %s, v5 offset:%d" % (vr(52 + p * 8), p * 8 * 272 + 16))
    if which == 4:
        for i in range(4):
            a("v_lshlrev_b32 v%d, 16, v%d" % (72 + 2 * i, 104 + i))
            a("v_and_b32 v%d, 0xffff0000, v%d" % (73 + 2 * i, 104 + i))
    a("s_waitcnt lgkmcnt(0)")
    for p in range(2):
        for i in range(4):
            a("v_lshlrev_b32 v%d, 16, v%d" % (64 + 2 * i, 96 + p * 4 + i))
            a("v_and_b32 v%d, 0xffff0000, v%d" % (65 + 2 * i, 96 + p * 4 + i))
        for i in range(4):
            a("v_pk_add_f32 %s, %s, %s" % (vr(48 + p * 8 + 2 * i, 2), vr(48 + p * 8 + 2 * i, 2), vr(64 + 2 * i, 2)))
        if which == 4:
            for i in range(4):
                a("v_pk_add_f32 %s, %s, %s" % (vr(48 + p * 8 + 2 * i, 2), vr(48 + p * 8 + 2 * i, 2), vr(72 + 2 * i, 2)))
        for i in range(4):
            a("v_cvt_pk_bf16_f32 v%d, v%d, v%d" % (96 + p * 4 + i, 48 + p * 8 + 2 * i, 49 + p * 8 + 2 * i))
        a("buffer_store_dwordx4 %s, v%d, s[36:39], 0 offen%s" % (vr(96 + p * 4), 10 + p, STF))
    a.stamp_dump()
    a.label(done)
    a("s_endpgm")
    P.loader(2)
    return name, 112, 112, P.BUFSZ * P.NBUF


def gen_k3(a):
    name = "k3_w1_kernel"
    kernel_head(a, name)
    done = "L_k3_done"
    common_prologue(a, 256, done)
    map16(a)
    srd(a, 12, P_WS, 2048 * 512 * 2, WS_H)
    srd(a, 16, P_W1, 512 * 1792 * 2)
    srd(a, 20, P_WS, 2048 * 1792 * 2, WS_HID)
    srd(a, 36, P_B1, 1792 * 2)
    P = Pipe(a, 512, 64, 4, 128, 1024, 224, 3584, 4, 4, [9, 10, 11, 12], 0)
    a("s_lshl_b32 s27, s24, 7")
    a("s_mul_i32 s30, s25, 224")
    P.a_pattern(8, 27)
    for t in range(4):
        d = 9 + t
        a("s_lshl_b32 s3, s26, 6")
        a("s_add_u32 s3, s3, %d" % (t * 256))
        a("v_add_u32 v13, s3, v1")
        a("v_mul_u32_u24 v14, 2341, v13")
        a("v_lshrrev_b32 v14, 15, v14")
        a("v_mul_u32_u24 v15, 14, v14")
        a("v_sub_u32 v15, v13, v15")
        a("v_lshrrev_b32 v16, 1, v15")
        a("v_and_b32 v15, 1, v15")
        a("v_bfe_u32 v13, v14, 3, 1")
        a("v_lshlrev_b32 v13, 2, v13")
        a("v_sub_u32 v16, v16, v13")
        a("v_add_u32 v16, 7, v16")
        mod_wrap(a, 16, 7, 13)
        a("v_lshlrev_b32 v16, 5, v16")
        a("v_lshl_add_u32 v16, v15, 4, v16")
        a("v_mul_u32_u24 v14, 3584, v14")
        a("v_add3_u32 v%d, v14, v16, s30" % d)
    P.role_branch("k3", 8)
    a("v_lshlrev_b32 v5, 3, v3")
    a("v_add_u32 v5, s30, v5")
    for jp in range(7):
        a("buffer_load_dwordx2 %s, v5, s[36:39], 0 offen offset:%d" % (vr(200 + 2 * jp, 2), jp * 32))
    a("s_lshl_b32 s28, s26, 5")
    a("s_add_u32 s28, s28, s27")
    P.la_pattern(13)
    a("s_mul_i32 s3, s26, %d" % (32 * 128))
    a("v_add_u32 v13, s3, v13")
    a("v_add_u32 v14, s3, v14")
    a("v_lshrrev_b32 v5, 2, v2")
    a("v_and_b32 v6, 3, v2")
    a("v_lshl_add_u32 v5, v3, 3, v5")
    a("v_mul_u32_u24 v5, 224, v5")
    a("v_lshl_add_u32 v5, v6, 3, v5")
    a("v_add_u32 v5, %d, v5" % P.BOFF)
    a("v_and_b32 v6, 1, v3")
    a("v_lshl_add_u32 v15, v6, 7, v5")
    a("v_mul_u32_u24 v7, 96, v6")
    a("v_sub_u32 v16, v5, v7")
    a("v_lshlrev_b32 v6, 2, v6")
    a("v_add_u32 v7, s26, v6")
    mod_wrap(a, 7, 7, 17)
    a("v_lshl_add_u32 v17, v7, 5, v5")
    a("s_add_u32 s3, s26, 4")
    a("s_min_u32 s3, s3, 6")
    a("v_add_u32 v7, s3, v6")
    mod_wrap(a, 7, 7, 18)
    a("v_lshl_add_u32 v18, v7, 5, v5")
    addr_regs = [(20 + i, 13 + i) for i in range(6)]
    ACC = 32
    WS_ = [96, 132]
    AS_ = [168, 176]
    ST = 184
    SQ = 228
    for i in range(16):
        a("v_mov_b32 v%d, 0" % (SQ + i))
    a("v_mov_b32 v26, 0x3f803f80")
    for i in range(4):
        a("v_mov_b32 v%d, 0x3f803f80" % (188 + i))
    for i in range(64):
        a("v_mov_b32 v%d, 0" % (ACC + i))
    for i in range(4):
        a("v_mov_b32 v%d, 0" % (ST + i))

    def reads(ks, s):
        L = []
        for t in range(2):
            L.append("ds_read_b128 %s, v%d offset:%d" % (vr(AS_[s] + 4 * t), 20 + ks, t * 16 * 128))
        for jp in range(7):
            for h in range(2):
                L.append("ds_read_b64_tr_b16 %s, v%d offset:%d" % (vr(WS_[s] + jp * 4 + h * 2, 2), 22 if jp < 3 else 23, ks * 7168 + h * 896 + jp * 32))
        for e in range(2):
            for h in range(2):
                L.append("ds_read_b64_tr_b16 %s, v%d offset:%d" % (vr(WS_[s] + 28 + e * 4 + h * 2, 2), 24 + e, ks * 7168 + h * 896))
        return L

    def compute(ks, s):
        mf = []
        for jp in range(7):
            for t in range(2):
                mf.append(mfma(ACC + t * 28 + jp * 4, WS_[s] + jp * 4, AS_[s] + 4 * t))
        mf.append(mfma(88, WS_[s] + 28, 188))
        mf.append(mfma(92, WS_[s] + 32, 188))
        for t in range(2):
            mf.append(mfma(SQ + 8 * t, 188, AS_[s] + 4 * t))
            mf.append(mfma(SQ + 8 * t + 4, AS_[s] + 4 * t, AS_[s] + 4 * t))
        return mf, [], []

    P.run("k3", 8, addr_regs, reads, compute)
    a("s_waitcnt vmcnt(0)")
    stats_extract(a, SQ, ST, 2)
    a("v_mov_b32 v4, %s" % f32hex(1.0 / 512))
    a("v_mov_b32 v5, %s" % f32hex(1e-5))
    for t in range(2):
        s_, q_ = ST + 2 * t, ST + 2 * t + 1
        a("v_mul_f32 v%d, v%d, v4" % (s_, s_))
        a("v_mul_f32 v%d, v%d, v4" % (q_, q_))
        a("v_fma_f32 v%d, -v%d, v%d, v%d" % (q_, s_, s_, q_))
        a("v_max_f32 v%d, 0, v%d" % (q_, q_))
        a("v_add_f32 v6, v%d, v5" % q_)
        a("v_rcp_f32 v7, v6")
        a("v_rsq_f32 v6, v6")
        a("s_nop 0")
        a("v_fma_f32 v7, v%d, v7, v5" % q_)
        a("v_rsq_f32 v7, v7")
        a("s_nop 0")
        a("v_mul_f32 v%d, v6, v7" % (218 + 4 * t))
        a("v_mul_f32 v%d, v6, v7" % (219 + 4 * t))
        a("v_mul_f32 v%d, v%d, v%d" % (216 + 4 * t, s_, 218 + 4 * t))
        a("v_mul_f32 v%d, v%d, v%d" % (217 + 4 * t, s_, 218 + 4 * t))
    a.stamp()
    CS = 131072
    a("v_lshlrev_b32 v6, 4, v3")
    a("v_add_u32 v6, %d, v6" % CS)
    a("s_lshl_b32 s3, s26, 6")
    a("v_add_u32 v7, s3, v6")
    a("s_add_u32 s3, s26, 4")
    a("s_min_u32 s3, s3, 6")
    a("s_lshl_b32 s3, s3, 6")
    a("v_add_u32 v8, s3, v6")
    a("v_cmp_eq_u32 vcc, 0, v2")
    a("s_and_saveexec_b64 s[34:35], vcc")
    a("ds_write_b128 v7, %s" % vr(88))
    a("ds_write_b128 v8, %s" % vr(92))
    a("s_mov_b64 exec, s[34:35]")
    a("s_waitcnt lgkmcnt(0)")
    a("s_barrier")
    for jp in range(7):
        a("ds_read_b128 %s, v6 offset:%d" % (vr(96 + jp * 4), jp * 64))
    a("s_mul_i32 s31, s26, 7680")
    a("s_mov_b32 s32, 3584")
    a("v_mul_u32_u24 v30, 240, v2")
    a("v_lshl_add_u32 v30, v3, 3, v30")
    a("v_add_u32 v30, s31, v30")
    C0 = 0.7978845608028654
    c1 = f32hex(-2.0 * LOG2E * C0)
    c2 = f32hex(-2.0 * LOG2E * C0 * 0.044715)
    a("v_mov_b32 v224, %s" % c1)
    a("v_mov_b32 v225, %s" % c1)
    a("v_mov_b32 v226, %s" % c2)
    a("v_mov_b32 v227, %s" % c2)
    for jp in range(7):
        a("v_lshlrev_b32 v%d, 16, v%d" % (124 + 4 * jp, 200 + 2 * jp))
        a("v_and_b32 v%d, 0xffff0000, v%d" % (125 + 4 * jp, 200 + 2 * jp))
        a("v_lshlrev_b32 v%d, 16, v%d" % (126 + 4 * jp, 201 + 2 * jp))
        a("v_and_b32 v%d, 0xffff0000, v%d" % (127 + 4 * jp, 201 + 2 * jp))
    a("s_waitcnt lgkmcnt(0)")
    a.stamp()
    TB = 152
    prs = [(t, jp, p) for t in range(2) for jp in range(7) for p in range(2)]

    def A_(t, jp, p):
        return vr(ACC + t * 28 + jp * 4 + 2 * p, 2)

    def T_(t, jp, p):
        return vr(TB + t * 28 + jp * 4 + 2 * p, 2)

    for (t, jp, p) in prs:
        a("v_pk_fma_f32 %s, %s, %s, %s neg_lo:[1,0,0] neg_hi:[1,0,0]" % (T_(t, jp, p), vr(216 + 4 * t, 2), vr(96 + jp * 4 + 2 * p, 2), vr(124 + jp * 4 + 2 * p, 2)))
    for (t, jp, p) in prs:
        a("v_pk_fma_f32 %s, %s, %s, %s" % (A_(t, jp, p), A_(t, jp, p), vr(218 + 4 * t, 2), T_(t, jp, p)))
    for (t, jp, p) in prs:
        a("v_pk_mul_f32 %s, %s, %s" % (T_(t, jp, p), A_(t, jp, p), A_(t, jp, p)))
    for (t, jp, p) in prs:
        a("v_pk_fma_f32 %s, %s, %s, %s" % (T_(t, jp, p), T_(t, jp, p), vr(226, 2), vr(224, 2)))
    for (t, jp, p) in prs:
        a("v_pk_mul_f32 %s, %s, %s" % (T_(t, jp, p), T_(t, jp, p), A_(t, jp, p)))
    for i in range(56):
        a("v_exp_f32 v%d, v%d" % (TB + i, TB + i))
    for (t, jp, p) in prs:
        a("v_pk_add_f32 %s, %s, 1.0 op_sel_hi:[1,0]" % (T_(t, jp, p), T_(t, jp, p)))
    for i in range(56):
        a("v_rcp_f32 v%d, v%d" % (TB + i, TB + i))
    for (t, jp, p) in prs:
        a("v_pk_mul_f32 %s, %s, %s" % (A_(t, jp, p), A_(t, jp, p), T_(t, jp, p)))
    for t in range(2):
        for jp in range(7):
            accb = ACC + t * 28 + jp * 4
            T = TB + t * 28 + jp * 4
            a("v_cvt_pk_bf16_f32 v%d, v%d, v%d" % (T, accb, accb + 1))
            a("v_cvt_pk_bf16_f32 v%d, v%d, v%d" % (T + 1, accb + 2, accb + 3))
    for t in range(2):
        for jp in range(7):
            T = TB + t * 28 + jp * 4
            a("ds_write_b64 v30, %s offset:%d" % (vr(T, 2), t * 16 * 240 + jp * 32))
    a.stamp()
    for p in range(7):
        a("v_add_u32 v4, %d, v1" % (p * 64))
        a("v_mul_u32_u24 v5, 2341, v4")
        a("v_lshrrev_b32 v5, 15, v5")
        a("v_mul_u32_u24 v6, 14, v5")
        a("v_sub_u32 v6, v4, v6")
        a("v_lshlrev_b32 v6, 4, v6")
        a("v_mul_u32_u24 v7, 240, v5")
        a("v_add3_u32 v%d, v7, v6, s31" % (32 + p))
        a("v_add_u32 v5, s28, v5")
        a("v_mul_lo_u32 v5, v5, s32")
        a("v_add3_u32 v%d, v5, v6, s30" % (40 + p))
    a("s_waitcnt lgkmcnt(0)")
    for p in range(7):
        a("ds_read_b128 %s, v%d" % (vr(96 + 4 * p), 32 + p))
    for p in range(7):
        a("s_waitcnt lgkmcnt(%d)" % (6 - p))
        a("buffer_store_dwordx4 %s, v%d, s[20:23], 0 offen%s" % (vr(96 + 4 * p), 40 + p, STF))
    a.stamp()
    a.stamp_dump()
    a.label(done)
    a("s_endpgm")
    P.loader(1)
    return name, 244, 244, 131072 + 512


def main():
    global STAMP, OUT, EXP, STF
    if len(sys.argv) > 1 and sys.argv[1] == "stamp":
        STAMP = True
        OUT = "stamp.s"
        if len(sys.argv) > 2:
            EXP = sys.argv[2]
            OUT = "stamp_%s.s" % EXP
            if "sc1" in EXP:
                STF = " sc1"
            if "nt" in EXP:
                STF = " nt"
            if "both" in EXP:
                STF = " sc0 sc1"
    a = Asm()
    ks = [gen_k1(a), gen_k24(a, 2), gen_k3(a), gen_k24(a, 4)]
    head = open("cdna_kernels/%s.s.ref" % NAME).read().split("; Override launch")[0]
    out = head
    for (name, nv, acc, lds) in ks:
        out += "; @launch kernel=%s grid=(256,1,1) block=(512,1,1) lds=%d\n" % (name, lds)
    out += '.amdgcn_target "amdgcn-amd-amdhsa--gfx950"\n.text\n'
    out += a.text()
    out += '.section .rodata,"a"\n'
    for (name, nv, acc, lds) in ks:
        out += ".p2align 6\n" + kernel_desc(name, nv, acc)
    open(OUT, "w").write(out)
    print("wrote", OUT, len(out))


if __name__ == "__main__":
    assert all((sl * 2731) >> 15 == sl // 12 for sl in range(768))
    assert all((sl * 2341) >> 15 == sl // 14 for sl in range(1024))
    main()
```

```python
import sys, struct

NAME = "sequential_preLN__sliding_local_dilated__mixer_channel_mlp__prompt"
OUT = "cdna_kernels/%s.s" % NAME

WS_O = 0
WS_H = 2 * 1024 * 1024
WS_HID = 4 * 1024 * 1024
LOG2E = 1.4426950408889634
STAMP = False
EXP = ""
STF = ""
STREG = list(range(86, 100)) + list(range(52, 60))


def f32hex(x):
    return "0x%08x" % struct.unpack("<I", struct.pack("<f", x))[0]


class Asm:
    def __init__(self):
        self.lines = []
        self.nst = 0
        self.kidx = 0

    def __call__(self, s):
        self.lines.append("    " + s)

    def label(self, s):
        self.lines.append(s + ":")

    def raw(self, s):
        self.lines.append(s)

    def text(self):
        return "\n".join(self.lines) + "\n"

    def stamp(self):
        if not STAMP:
            return
        if self.nst == 0:
            self("s_memrealtime s[100:101]")
            self("s_waitcnt lgkmcnt(0)")
            self("s_mov_b32 s%d, s100" % STREG[-1])
        self("s_memtime s[100:101]")
        self("s_waitcnt lgkmcnt(0)")
        self("s_mov_b32 s%d, s100" % STREG[self.nst])
        self.nst += 1

    def stamp_dump(self):
        if not STAMP:
            return
        self("s_waitcnt vmcnt(0)")
        self.stamp()
        n = self.nst
        self("s_or_b32 s3, s26, s51")
        self("s_cmp_lg_u32 s3, 0")
        self("s_cbranch_scc1 L_st_skip%d" % self.kidx)
        self("s_add_u32 s60, s84, %d" % (12 * 1024 * 1024 + self.kidx * 65536))
        self("s_addc_u32 s61, s85, 0")
        self("s_and_b32 s61, s61, 0xffff")
        self("s_mov_b32 s62, 65536")
        self("s_mov_b32 s63, 0x20000")
        self("s_lshl_b32 s3, s2, 7")
        self("v_mov_b32 v1, s3")
        for i in range(n):
            self("v_mov_b32 v2, s%d" % STREG[i])
            self("buffer_store_dword v2, v1, s[60:63], 0 offen offset:%d" % (4 * i))
        self("s_memrealtime s[100:101]")
        self("s_waitcnt lgkmcnt(0)")
        self("v_mov_b32 v2, s%d" % STREG[-1])
        self("buffer_store_dword v2, v1, s[60:63], 0 offen offset:120")
        self("v_mov_b32 v2, s100")
        self("buffer_store_dword v2, v1, s[60:63], 0 offen offset:124")
        self.label("L_st_skip%d" % self.kidx)
        self.nst = 0
        self.kidx += 1


def srd(a, d, ptr, nbytes, off=0):
    if off:
        a("s_add_u32 s%d, s%d, %d" % (d, ptr, off))
        a("s_addc_u32 s%d, s%d, 0" % (d + 1, ptr + 1))
        a("s_and_b32 s%d, s%d, 0xffff" % (d + 1, d + 1))
    else:
        a("s_mov_b32 s%d, s%d" % (d, ptr))
        a("s_and_b32 s%d, s%d, 0xffff" % (d + 1, ptr + 1))
    a("s_mov_b32 s%d, %d" % (d + 2, nbytes))
    a("s_mov_b32 s%d, 0x00020000" % (d + 3))


def kernel_head(a, name):
    a.raw(".globl %s" % name)
    a.raw(".p2align 8")
    a.raw(".type %s,@function" % name)
    a.label(name)


def kernel_desc(name, nvgpr, accum, nsgpr=102):
    return """.amdhsa_kernel %s
  .amdhsa_next_free_vgpr %d
  .amdhsa_next_free_sgpr %d
  .amdhsa_accum_offset %d
  .amdhsa_group_segment_fixed_size 0
  .amdhsa_kernarg_size 88
  .amdhsa_user_sgpr_count 2
  .amdhsa_user_sgpr_kernarg_segment_ptr 1
  .amdhsa_system_sgpr_workgroup_id_x 1
.end_amdhsa_kernel
""" % (name, nvgpr, nsgpr, accum)


def vr(b, n=4):
    return "v[%d:%d]" % (b, b + n - 1)


P_X, P_WQKV, P_WO, P_W1, P_B1, P_W2, P_B2, P_OUT, P_WS = 64, 66, 68, 72, 74, 76, 78, 80, 84


def common_prologue(a, nwg, done):
    if "half" in EXP:
        nwg = 128
    if "quarter" in EXP:
        nwg = 64
    a("s_cmp_ge_u32 s2, %d" % nwg)
    a("s_cbranch_scc1 %s" % done)
    a("s_load_dwordx16 s[64:79], s[0:1], 0")
    a("s_load_dwordx4 s[80:83], s[0:1], 64")
    a("s_load_dwordx2 s[84:85], s[0:1], 80")
    a("v_and_b32 v1, 63, v0")
    a("v_lshrrev_b32 v4, 6, v0")
    a("v_and_b32 v2, 15, v0")
    a("v_bfe_u32 v3, v0, 4, 2")
    a("v_readfirstlane_b32 s26, v4")
    a("s_waitcnt lgkmcnt(0)")
    a("s_lshr_b32 s51, s26, 2")
    a("s_and_b32 s26, s26, 3")
    a.stamp()


def map16(a):
    a("s_bfe_u32 s24, s2, 0x20001")
    a("s_lshl_b32 s24, s24, 2")
    a("s_lshr_b32 s25, s2, 6")
    a("s_add_u32 s24, s24, s25")
    a("s_and_b32 s25, s2, 1")
    a("s_lshl_b32 s25, s25, 3")
    a("s_bfe_u32 s3, s2, 0x30003")
    a("s_add_u32 s25, s25, s3")


def map32x8(a):
    a("s_and_b32 s24, s2, 7")
    a("s_lshl_b32 s24, s24, 2")
    a("s_lshr_b32 s25, s2, 6")
    a("s_add_u32 s24, s24, s25")
    a("s_bfe_u32 s25, s2, 0x30003")


def merge3(mf, rd, va, tail):
    out = []
    if "novalu" in EXP:
        va = []
    if "nord" in EXP:
        rd = []
    if "nomf" in EXP:
        mf = ["s_nop 0"]
        tail = []
    if "trhalf" in EXP:
        rd = [r for i, r in enumerate(rd) if "tr" not in r or i % 2 == 0]
    if "nob128" in EXP:
        rd = [r for r in rd if "b128" not in r]
    n = len(mf)
    ri = vi = 0
    for i, m in enumerate(mf):
        out.append(m)
        rt = (len(rd) * (i + 1) + n - 1) // n
        vt = (len(va) * (i + 1) + n - 1) // n
        while ri < rt:
            out.append(rd[ri]); ri += 1
        while vi < vt:
            out.append(va[vi]); vi += 1
    out += rd[ri:] + va[vi:] + tail
    return out


def interleave(mf, va, lead=0):
    out = []
    n = len(mf)
    per = -(-len(va) // max(n, 1))
    vi = 0
    for i, m in enumerate(mf):
        out.append(m)
        for _ in range(per):
            if vi < len(va):
                out.append(va[vi])
                vi += 1
    out += va[vi:]
    return out


class Pipe:
    def __init__(self, a, K, KC, NBUF, RA, A_RS, BROW, B_RS, nA, nB, BPAT, bt_adv):
        self.a = a
        self.K, self.KC, self.NBUF = K, KC, NBUF
        self.NC = K // KC
        self.KSC = KC // 32
        self.AROW = KC * 2
        self.RA, self.A_RS, self.BROW, self.B_RS = RA, A_RS, BROW, B_RS
        self.nA, self.nB = nA, nB
        self.BOFF = nA * 4 * 1024
        self.BUFSZ = (nA + nB) * 4 * 1024
        self.BPAT = BPAT
        self.bt_adv = bt_adv
        self.rows_per_instr = 1024 // self.AROW
        self.ND = nA + nB

    def a_pattern(self, dst, rowbase_s):
        a = self.a
        rpi = self.rows_per_instr
        if rpi == 8:
            a("v_lshrrev_b32 v5, 3, v1")
            a("v_and_b32 v6, 7, v1")
            a("s_lshl_b32 s3, s26, 2")
            a("v_lshrrev_b32 v7, 1, v5")
            a("v_add_u32 v7, s3, v7")
            a("v_and_b32 v7, 7, v7")
        else:
            a("v_lshrrev_b32 v5, 4, v1")
            a("v_and_b32 v6, 15, v1")
            a("s_lshl_b32 s3, s26, 2")
            a("v_add_u32 v7, s3, v5")
        a("v_xor_b32 v6, v6, v7")
        a("s_mul_i32 s3, s26, %d" % rpi)
        a("s_add_u32 s3, s3, s%d" % rowbase_s)
        a("v_add_u32 v5, s3, v5")
        a("s_mov_b32 s3, %d" % self.A_RS)
        a("v_mul_lo_u32 v5, v5, s3")
        a("v_lshl_add_u32 v%d, v6, 4, v5" % dst)

    def la_pattern(self, dst):
        a = self.a
        if self.rows_per_instr == 8:
            a("v_lshrrev_b32 v5, 1, v2")
        else:
            a("v_mov_b32 v5, v2")
        a("v_mul_u32_u24 v6, %d, v2" % self.AROW)
        for ks in range(self.KSC):
            a("v_add_u32 v7, %d, v3" % (4 * ks))
            a("v_xor_b32 v7, v7, v5")
            a("v_lshl_add_u32 v%d, v7, 4, v6" % (dst + ks))

    def role_branch(self, name, APAT):
        self.name, self.APAT = name, APAT
        self.init_state()
        self.a("s_cmp_lg_u32 s51, 0")
        self.a("s_cbranch_scc1 L_%s_loader" % name)

    def init_state(self):
        a = self.a
        a("s_mov_b32 s40, 0")
        a("s_mov_b32 s41, 0")
        if "norot" in EXP or self.RA != 160:
            a("s_mov_b32 s42, 0")
            a("s_mov_b32 s43, 0")
        else:
            a("s_add_u32 s42, s24, s25")
            if self.NC & (self.NC - 1) == 0:
                a("s_and_b32 s42, s42, %d" % (self.NC - 1))
            else:
                a("s_mul_i32 s43, s42, %d" % ((65536 + self.NC - 1) // self.NC))
                a("s_lshr_b32 s43, s43, 16")
                a("s_mul_i32 s43, s43, %d" % self.NC)
                a("s_sub_u32 s42, s42, s43")
            a("s_mul_i32 s43, s42, %d" % (self.KC * self.B_RS))
            a("s_mul_i32 s42, s42, %d" % (self.KC * 2))
        a("s_mov_b32 s44, 0")
        a("s_lshl_b32 s46, s26, 10")

    def dma(self, pat, srd_, so):
        if "contig" in EXP:
            self.cnt = getattr(self, "cnt", 0) + 1
            self.a("s_lshl_b32 s49, s40, 15")
            self.a("s_add_u32 s49, s49, %d" % ((self.cnt % 32) * 4096 % 262144))
            self.a("s_lshl_b32 s50, s2, 11")
            self.a("s_add_u32 s49, s49, s50")
            self.a("v_lshlrev_b32 v5, 4, v0")
            self.a("buffer_load_dwordx4 v5, s[%d:%d], s49 offen lds" % (srd_, srd_ + 3))
        elif "vgpr" in EXP:
            self.rot = (getattr(self, "rot", 0) + 1) % 8
            self.a("buffer_load_dwordx4 %s, v%d, s[%d:%d], s%d offen" % (vr(64 + 4 * self.rot), pat, srd_, srd_ + 3, so))
        else:
            self.a("buffer_load_dwordx4 v%d, s[%d:%d], s%d offen lds" % (pat, srd_, srd_ + 3, so))

    def issue_chunk(self, APAT):
        a = self.a
        a("s_add_u32 s47, s41, s46")
        for t in range(self.nA):
            a("s_add_u32 m0, s47, %d" % (t * 4096))
            if isinstance(APAT, list):
                a("s_nop 0")
                self.dma(APAT[t], 12, 42)
            else:
                a("s_add_u32 s48, s42, %d" % (t * 4 * self.rows_per_instr * self.A_RS))
                self.dma(APAT, 12, 48)
        for t in range(self.nB):
            a("s_add_u32 m0, s47, %d" % (self.BOFF + t * 4096))
            a("s_add_u32 s48, s43, %d" % (t * self.bt_adv))
            self.dma(self.BPAT[t], 16, 48)
        a("s_add_u32 s41, s41, %d" % self.BUFSZ)
        a("s_cmp_ge_u32 s41, %d" % (self.BUFSZ * self.NBUF))
        a("s_cselect_b32 s41, 0, s41")
        a("s_add_u32 s42, s42, %d" % (self.KC * 2))
        a("s_add_u32 s43, s43, %d" % (self.KC * self.B_RS))
        a("s_cmp_ge_u32 s42, %d" % (self.K * 2))
        a("s_cselect_b32 s42, 0, s42")
        a("s_cselect_b32 s43, 0, s43")

    def run(self, name, APAT, addr_regs, reads, compute):
        a = self.a
        NB, NC, KSC, ND = self.NBUF, self.NC, self.KSC, self.ND
        for (cur, base) in addr_regs:
            a("v_mov_b32 v%d, v%d" % (cur, base))
        a.stamp()
        a("s_barrier")
        a.stamp()
        for l in reads(0, 0):
            a(l)
        a("s_waitcnt lgkmcnt(0)")
        a.label("L_%s_loop" % name)
        for ks in range(KSC - 1):
            mf, va, tail = compute(ks, ks & 1)
            for l in merge3(mf, reads(ks + 1, (ks + 1) & 1), va, tail):
                a(l)
            a("s_waitcnt lgkmcnt(0)")
        a("s_barrier")
        a("s_add_u32 s44, s44, %d" % self.BUFSZ)
        a("s_cmp_ge_u32 s44, %d" % (self.BUFSZ * NB))
        a("s_cselect_b32 s44, 0, s44")
        for (cur, base) in addr_regs:
            a("v_add_u32 v%d, s44, v%d" % (cur, base))
        mf, va, tail = compute(KSC - 1, (KSC - 1) & 1)
        for l in merge3(mf, reads(0, 0), va, tail):
            a(l)
        a("s_waitcnt lgkmcnt(0)")
        a("s_add_u32 s40, s40, 1")
        a("s_cmp_lt_u32 s40, %d" % NC)
        a("s_cbranch_scc1 L_%s_loop" % name)
        a("s_nop 7")
        a("s_nop 7")
        a.stamp()

    def loader(self, n_epi_barriers, extra=None, join=None):
        a = self.a
        name, APAT = self.name, self.APAT
        NB, NC, KSC, ND = self.NBUF, self.NC, self.KSC, self.ND
        a.label("L_%s_loader" % name)
        for c in range(2):
            self.issue_chunk(APAT)
        a("s_waitcnt vmcnt(%d)" % ND)
        a("s_barrier")
        for c in range(2, NB):
            self.issue_chunk(APAT)
        a.label("L_%s_lloop" % name)
        a("s_cmp_lt_u32 s40, %d" % (NC - NB + 1))
        a("s_cbranch_scc1 L_%s_wfull" % name)
        for r in range(NB - 3, -1, -1):
            if NC - 2 - r >= 0:
                a("s_cmp_eq_u32 s40, %d" % (NC - 2 - r))
                a("s_cbranch_scc0 L_%s_w%d" % (name, r))
                a("s_waitcnt vmcnt(%d)" % (ND * r))
                a("s_branch L_%s_wdone" % name)
                a.label("L_%s_w%d" % (name, r))
        a("s_waitcnt vmcnt(0)")
        a("s_branch L_%s_wdone" % name)
        a.label("L_%s_wfull" % name)
        a("s_waitcnt vmcnt(%d)" % (ND * (NB - 2)))
        a.label("L_%s_wdone" % name)
        a("s_barrier")
        a("s_cmp_lt_u32 s40, %d" % (NC - NB))
        a("s_cbranch_scc0 L_%s_noissue" % name)
        self.issue_chunk(APAT)
        a.label("L_%s_noissue" % name)
        a("s_add_u32 s40, s40, 1")
        a("s_cmp_lt_u32 s40, %d" % NC)
        a("s_cbranch_scc1 L_%s_lloop" % name)
        if extra:
            extra()
        for i in range(n_epi_barriers):
            a("s_barrier")
        if join:
            a("s_waitcnt vmcnt(0)")
            a("s_branch %s" % join)
        else:
            a("s_endpgm")


def mfma(d, A, B):
    return "v_mfma_f32_16x16x32_bf16 %s, %s, %s, %s" % (vr(d), vr(A), vr(B), vr(d))


def reduce_groups(a, regs, tmp, addr16, addr32):
    for addr in (addr16, addr32):
        for i, r in enumerate(regs):
            a("ds_bpermute_b32 v%d, v%d, v%d" % (tmp + i, addr, r))
        a("s_waitcnt lgkmcnt(0)")
        for i, r in enumerate(regs):
            a("v_add_f32 v%d, v%d, v%d" % (r, r, tmp + i))


def stats_extract(a, SQ, ST, nt):
    a("v_and_b32 v4, 3, v2")
    a("v_cmp_eq_u32 s[36:37], 1, v4")
    a("v_cmp_eq_u32 s[38:39], 2, v4")
    a("v_cmp_eq_u32 vcc, 3, v4")
    a("v_lshrrev_b32 v4, 2, v2")
    a("v_lshl_add_u32 v4, v4, 4, v2")
    a("v_lshlrev_b32 v4, 2, v4")
    for t in range(nt):
        g = SQ + 8 * t + 4
        a("v_cndmask_b32 v%d, v%d, v%d, s[36:37]" % (g, g, g + 1))
        a("v_cndmask_b32 v%d, v%d, v%d, s[38:39]" % (g, g, g + 2))
        a("v_cndmask_b32 v%d, v%d, v%d, vcc" % (g, g, g + 3))
        a("ds_bpermute_b32 v%d, v4, v%d" % (ST + 2 * t + 1, g))
        a("v_mov_b32 v%d, v%d" % (ST + 2 * t, SQ + 8 * t))
    a("s_waitcnt lgkmcnt(0)")


def mod_wrap(a, v, m, tmp):
    a("v_subrev_u32 v%d, %d, v%d" % (tmp, m, v))
    a("v_min_u32 v%d, v%d, v%d" % (v, v, tmp))


def gen_k1(a):
    name = "k1_qkv_attn_kernel"
    kernel_head(a, name)
    done = "L_k1_done"
    common_prologue(a, 256, done)
    map16(a)
    srd(a, 12, P_X, 2048 * 512 * 2)
    srd(a, 16, P_WQKV, 512 * 1536 * 2)
    srd(a, 20, P_WS, 2048 * 512 * 2, WS_O)
    P = Pipe(a, 512, 64, 3, 160, 1024, 192, 3072, 5, 3, [9, 10, 11], 0)
    a("s_lshl_b32 s27, s24, 7")
    a("s_sub_u32 s28, s27, 16")
    a("s_lshl_b32 s30, s25, 6")
    P.a_pattern(8, 28)
    for t in range(3):
        d = 9 + t
        a("s_lshl_b32 s3, s26, 6")
        a("s_add_u32 s3, s3, %d" % (t * 256))
        a("v_add_u32 v12, s3, v1")
        a("v_mul_u32_u24 v13, 2731, v12")
        a("v_lshrrev_b32 v13, 15, v13")
        a("v_mul_u32_u24 v14, 12, v13")
        a("v_sub_u32 v14, v12, v14")
        a("v_lshrrev_b32 v15, 1, v14")
        a("v_and_b32 v14, 1, v14")
        a("v_bfe_u32 v16, v13, 3, 1")
        a("v_sub_u32 v15, v15, v16")
        a("v_add_u32 v15, 6, v15")
        mod_wrap(a, 15, 6, 16)
        a("v_lshrrev_b32 v16, 1, v15")
        a("v_and_b32 v15, 1, v15")
        a("v_lshlrev_b32 v15, 5, v15")
        a("v_lshl_add_u32 v15, v14, 4, v15")
        a("v_lshl_add_u32 v15, v16, 10, v15")
        a("v_mul_u32_u24 v13, 3072, v13")
        a("v_add3_u32 v%d, v13, v15, s30" % d)
    for t in range(1, 5):
        a("v_add_u32 v%d, %d, v8" % (203 + t, t * 32 * 1024))
    P.role_branch("k1", [8, 204, 205, 206, 207])
    P.la_pattern(12)
    a("v_lshrrev_b32 v5, 2, v2")
    a("v_and_b32 v6, 3, v2")
    a("v_lshl_add_u32 v5, v3, 3, v5")
    a("v_mul_u32_u24 v5, 192, v5")
    a("v_lshl_add_u32 v5, v6, 3, v5")
    a("v_add_u32 v5, %d, v5" % P.BOFF)
    a("v_and_b32 v6, 1, v3")
    a("v_lshl_add_u32 v14, v6, 5, v5")
    a("v_mul_u32_u24 v7, 160, v6")
    a("v_sub_u32 v15, 160, v7")
    a("v_add_u32 v15, v15, v5")
    a("s_add_u32 s3, s26, 2")
    a("v_add_u32 v7, s3, v6")
    mod_wrap(a, 7, 6, 16)
    a("v_lshl_add_u32 v16, v7, 5, v5")
    a("s_and_b32 s3, s26, 1")
    a("v_add_u32 v7, s3, v6")
    a("v_lshl_add_u32 v17, v7, 5, v5")
    addr_regs = [(18, 12), (19, 13), (20, 14), (21, 15), (22, 16), (23, 17)]
    ACC = 32
    WS_ = [88, 120]
    AS_ = [152, 164]
    ST = 176
    SQ = 208
    ONES = 232
    for i in range(24):
        a("v_mov_b32 v%d, 0" % (SQ + i))
    for i in range(4):
        a("v_mov_b32 v%d, 0x3f803f80" % (ONES + i))
    a("v_mov_b32 v24, 0x3f803f80")
    a("v_cmp_eq_u32 s[34:35], 0, v2")
    for i in range(56):
        a("v_mov_b32 v%d, 0" % (ACC + i))
    for i in range(6):
        a("v_mov_b32 v%d, 0" % (ST + i))
    arow = [16, 32, 0]
    a("s_mul_i32 s3, s26, %d" % (32 * 128))
    a("v_add_u32 v25, s3, v12")
    a("v_add_u32 v26, s3, v13")
    addr_regs += [(28, 25), (29, 26)]

    def reads(ks, s):
        L = []
        for t in range(2):
            L.append("ds_read_b128 %s, v%d offset:%d" % (vr(AS_[s] + 4 * t), 28 + ks, arow[t] * 128))
        L.append("ds_read_b128 %s, v%d" % (vr(AS_[s] + 8), 18 + ks))
        for jp in range(6):
            for h in range(2):
                off = ks * 6144 + h * 768 + (jp * 32 if jp < 5 else 0)
                L.append("ds_read_b64_tr_b16 %s, v%d offset:%d" % (vr(WS_[s] + jp * 4 + h * 2, 2), 20 if jp < 5 else 21, off))
        for e in range(2):
            for h in range(2):
                L.append("ds_read_b64_tr_b16 %s, v%d offset:%d" % (vr(WS_[s] + 24 + e * 4 + h * 2, 2), 22 + e, ks * 6144 + h * 768))
        return L

    def compute(ks, s):
        mf = []
        for jp in range(6):
            for t in range(2):
                mf.append(mfma(ACC + t * 24 + jp * 4, WS_[s] + jp * 4, AS_[s] + 4 * t))
        pre = []
        for t in (2, 0, 1):
            pre.append(mfma(SQ + 8 * t, ONES, AS_[s] + 4 * t))
            pre.append(mfma(SQ + 8 * t + 4, AS_[s] + 4 * t, AS_[s] + 4 * t))
        mf = pre + mf
        va = []
        tail = []
        for i in range(4):
            r = AS_[s] + 8 + i
            tail.append("v_cndmask_b32 v%d, v%d, v24, s[34:35]" % (r, r))
        return mf, va, tail + ["s_nop 1", mfma(80, WS_[s] + 24, AS_[s] + 8), mfma(84, WS_[s] + 28, AS_[s] + 8)]

    P.run("k1", [8, 204, 205, 206, 207], addr_regs, reads, compute)
    stats_extract(a, SQ, ST, 3)
    a("v_mov_b32 v4, %s" % f32hex(1.0 / 512))
    a("v_mov_b32 v5, %s" % f32hex(1e-5))
    for t in range(3):
        s_, q_ = ST + 2 * t, ST + 2 * t + 1
        a("v_mul_f32 v%d, v%d, v4" % (s_, s_))
        a("v_mul_f32 v%d, v%d, v4" % (q_, q_))
        a("v_fma_f32 v%d, -v%d, v%d, v%d" % (q_, s_, s_, q_))
        a("v_max_f32 v%d, 0, v%d" % (q_, q_))
        a("v_add_f32 v%d, v%d, v5" % (q_, q_))
        a("v_rsq_f32 v%d, v%d" % (q_, q_))
        a("s_nop 0")
        a("v_mul_f32 v%d, v%d, v%d" % (192 + 4 * t, s_, q_))
        a("v_mul_f32 v%d, v%d, v%d" % (193 + 4 * t, s_, q_))
        a("v_mov_b32 v%d, v%d" % (194 + 4 * t, q_))
        a("v_mov_b32 v%d, v%d" % (195 + 4 * t, q_))
    CS = 131072
    a("v_lshlrev_b32 v6, 4, v3")
    a("v_add_u32 v7, %d, v6" % CS)
    a("s_add_u32 s36, s26, 2")
    a("s_lshl_b32 s36, s36, 6")
    a("v_add_u32 v8, s36, v7")
    a("s_and_b32 s37, s26, 1")
    a("s_lshl_b32 s37, s37, 6")
    a("v_add_u32 v9, s37, v7")
    a("s_and_saveexec_b64 s[36:37], s[34:35]")
    a("ds_write_b128 v8, %s" % vr(80))
    a("ds_write_b128 v9, %s" % vr(84))
    a("s_mov_b64 exec, s[36:37]")
    a("s_waitcnt lgkmcnt(0)")
    a("s_barrier")
    for jp in range(6):
        a("ds_read_b128 %s, v7 offset:%d" % (vr(88 + jp * 4), jp * 64))
    a("ds_read_b128 %s, v8" % vr(112))
    QB, KB, VB = 0, 128 * 144, 128 * 144 + 144 * 144
    a("s_lshl_b32 s36, s26, 5")
    a("v_add_u32 v10, s36, v2")
    a("v_mul_u32_u24 v10, 144, v10")
    a("v_add_u32 v10, v10, v6")
    a("v_mul_u32_u24 v11, 144, v2")
    a("v_add_u32 v11, v11, v6")
    a("s_cmp_lt_u32 s26, 2")
    a("s_mov_b32 s37, %d" % VB)
    a("s_cselect_b32 s36, %d, s37" % KB)
    a("s_and_b32 s37, s26, 1")
    a("s_lshl_b32 s37, s37, 6")
    a("s_add_u32 s36, s36, s37")
    a("v_add_u32 v11, s36, v11")
    a("s_waitcnt lgkmcnt(0)")

    def fix_write(accb, csb, st, addr, off):
        for p in range(2):
            a("v_pk_mul_f32 %s, %s, %s" % (vr(120 + 2 * p, 2), vr(csb + 2 * p, 2), vr(192 + 4 * st, 2)))
        for p in range(2):
            a("v_pk_fma_f32 %s, %s, %s, %s neg_lo:[0,0,1] neg_hi:[0,0,1]" % (vr(accb + 2 * p, 2), vr(accb + 2 * p, 2), vr(194 + 4 * st, 2), vr(120 + 2 * p, 2)))
        a("ds_write_b128 v%d, %s offset:%d" % (addr, vr(accb), off))

    for t in range(2):
        for jp in range(6):
            regbase = [QB, KB + 16 * 144, VB + 16 * 144][jp >> 1]
            fix_write(ACC + t * 24 + jp * 4, 88 + jp * 4, t, 10, regbase + t * 16 * 144 + (jp & 1) * 64)
    fix_write(80, 112, 2, 11, 0)
    a("s_waitcnt lgkmcnt(0)")
    a("s_barrier")
    a.stamp()
    a.label("L_k1_attn")
    a("v_bfe_u32 v4, v0, 1, 7")
    a("v_lshrrev_b32 v5, 8, v0")
    a("v_and_b32 v7, 1, v0")
    a("v_mul_u32_u24 v6, 144, v4")
    a("v_lshl_add_u32 v6, v5, 6, v6")
    a("v_lshl_add_u32 v6, v7, 5, v6")
    for i in range(2):
        a("ds_read_b128 %s, v6 offset:%d" % (vr(8 + 4 * i), QB + 16 * i))
    for w in range(8):
        for i in range(2):
            a("ds_read_b128 %s, v6 offset:%d" % (vr(64 + 8 * w + 4 * i), KB + 16 * 144 - 288 * w + 16 * i))
    a("v_mov_b32 v40, %s" % f32hex(0.25 * LOG2E))
    a("v_mov_b32 v41, %s" % f32hex(0.25 * LOG2E))
    a("s_waitcnt lgkmcnt(15)")
    a("s_waitcnt lgkmcnt(8)")
    for w in range(8):
        for i in range(2):
            a("ds_read_b128 %s, v6 offset:%d" % (vr(128 + 8 * w + 4 * i), VB + 16 * 144 - 288 * w + 16 * i))
        if w == 2:
            a("s_waitcnt lgkmcnt(6)")
    for i in range(4):
        a("v_pk_mul_f32 %s, %s, %s" % (vr(8 + 2 * i, 2), vr(8 + 2 * i, 2), vr(40, 2)))
    for w in range(8):
        kb = 64 + 8 * w
        a("v_pk_mul_f32 %s, %s, %s" % (vr(42 + 2 * w, 2), vr(8, 2), vr(kb, 2)))
    for i in range(1, 4):
        for w in range(8):
            kb = 64 + 8 * w
            a("v_pk_fma_f32 %s, %s, %s, %s" % (vr(42 + 2 * w, 2), vr(8 + 2 * i, 2), vr(kb + 2 * i, 2), vr(42 + 2 * w, 2)))
    for w in range(8):
        a("v_add_f32 v%d, v%d, v%d" % (24 + w, 42 + 2 * w, 43 + 2 * w))
    a("s_nop 1")
    for w in range(8):
        a("v_add_f32_dpp v%d, v%d, v%d quad_perm:[1,0,3,2] row_mask:0xf bank_mask:0xf" % (42 + w, 24 + w, 24 + w))
    a("v_add_u32 v32, s27, v4")
    a("v_mov_b32 v33, %s" % f32hex(-1e30))
    a("v_mov_b32 v24, v42")
    for w in range(1, 8):
        a("v_cmp_le_u32 vcc, %d, v32" % (2 * w))
        a("s_nop 1")
        a("v_cndmask_b32 v%d, v33, v%d, vcc" % (24 + w, 42 + w))
    a("v_max3_f32 v34, v24, v25, v26")
    a("v_max3_f32 v34, v34, v27, v28")
    a("v_max3_f32 v34, v34, v29, v30")
    a("v_max_f32 v34, v34, v31")
    for w in range(8):
        a("v_sub_f32 v%d, v%d, v34" % (24 + w, 24 + w))
    for w in range(8):
        a("v_exp_f32 v%d, v%d" % (24 + w, 24 + w))
    a("s_nop 0")
    a("v_add_f32 v35, v24, v25")
    for w in range(2, 8):
        a("v_add_f32 v35, v35, v%d" % (24 + w))
    a("v_rcp_f32 v35, v35")
    a("s_nop 0")
    for w in range(8):
        a("v_mul_f32 v%d, v%d, v35" % (44 + 2 * w, 24 + w))
    a("s_waitcnt lgkmcnt(0)")
    for i in range(4):
        a("v_pk_mul_f32 %s, %s, %s op_sel_hi:[0,1]" % (vr(8 + 2 * i, 2), vr(44, 2), vr(128 + 2 * i, 2)))
    for w in range(1, 8):
        for i in range(4):
            a("v_pk_fma_f32 %s, %s, %s, %s op_sel_hi:[0,1,1]" % (vr(8 + 2 * i, 2), vr(44 + 2 * w, 2), vr(128 + 8 * w + 2 * i, 2), vr(8 + 2 * i, 2)))
    for i in range(4):
        a("v_cvt_pk_bf16_f32 v%d, v%d, v%d" % (24 + i, 8 + 2 * i, 9 + 2 * i))
    a("v_lshlrev_b32 v32, 10, v32")
    a("v_lshl_add_u32 v32, v5, 5, v32")
    a("v_lshl_add_u32 v32, v7, 4, v32")
    a("v_add_u32 v32, s30, v32")
    a("buffer_store_dwordx4 %s, v32, s[20:23], 0 offen%s" % (vr(24), STF))
    a.stamp_dump()
    a.label(done)
    a("s_endpgm")
    def prefetch():
        srd(a, 52, P_WO, 512 * 512 * 2)
        a("v_lshlrev_b32 v4, 4, v1")
        a("s_lshl_b32 s3, s2, 11")
        a("s_lshl_b32 s56, s26, 9")
        a("s_add_u32 s3, s3, s56")
        a("v_and_b32 v5, 0x1ff, v4")
        a("buffer_load_dwordx4 %s, v5, s[52:55], s3 offen" % vr(64))
        srd(a, 52, P_W1, 512 * 1792 * 2)
        srd(a, 56, P_W2, 512 * 1792 * 2)
        a("s_mul_i32 s3, s2, 7168")
        a("s_mul_i32 s60, s26, 1792")
        a("s_add_u32 s3, s3, s60")
        a("buffer_load_dwordx4 %s, v4, s[52:55], s3 offen" % vr(68))
        a("buffer_load_dwordx4 %s, v4, s[52:55], s3 offen offset:768" % vr(72))
        a("buffer_load_dwordx4 %s, v4, s[56:59], s3 offen" % vr(76))
        a("buffer_load_dwordx4 %s, v4, s[56:59], s3 offen offset:768" % vr(80))
        if "nocode" not in EXP:
            a("s_getpc_b64 s[56:57]")
            a.label("L_pc_here")
            a("s_add_u32 s56, s56, k2_wo_kernel - L_pc_here")
            a("s_addc_u32 s57, s57, 0")
            a("s_lshr_b32 s3, s2, 3")
            a("s_lshl_b32 s3, s3, 2")
            a("s_add_u32 s3, s3, s26")
            a("s_lshl_b32 s3, s3, 10")
            a("v_add_u32 v5, s3, v4")
            a("v_min_u32 v5, L_code_end - k2_wo_kernel - 16, v5")
            a("global_load_dwordx4 %s, v5, s[56:57]" % vr(84))
    P.loader(2, prefetch if "nopf" not in EXP else None, "L_k1_attn")
    return name, 240, 240, 131072 + 512


def gen_k24(a, which):
    if which == 2:
        name = "k2_wo_kernel"
        K = 512
    else:
        name = "k4_w2_kernel"
        K = 1792
    kernel_head(a, name)
    done = "L_%s_done" % name
    common_prologue(a, 256, done)
    map32x8(a)
    if which == 2:
        srd(a, 12, P_WS, 2048 * 512 * 2, WS_O)
        srd(a, 16, P_WO, 512 * 512 * 2)
        srd(a, 20, P_X, 2048 * 512 * 2)
        srd(a, 36, P_WS, 2048 * 512 * 2, WS_H)
    else:
        srd(a, 12, P_WS, 2048 * 1792 * 2, WS_HID)
        srd(a, 16, P_W2, 1792 * 512 * 2)
        srd(a, 20, P_WS, 2048 * 512 * 2, WS_H)
        srd(a, 36, P_OUT, 2048 * 512 * 2)
        srd(a, 60, P_B2, 512 * 2)
    P = Pipe(a, K, 128, 4 if which == 2 else 3, 64, K * 2, 128, 1024, 4, 4, [9, 9, 9, 9], 32 * 1024)
    a("s_lshr_b32 s27, s26, 1")
    a("s_and_b32 s28, s26, 1")
    a("s_lshl_b32 s29, s24, 6")
    P.a_pattern(8, 29)
    a("v_lshrrev_b32 v5, 3, v1")
    a("v_bfe_u32 v6, v1, 1, 2")
    a("v_bfe_u32 v7, v1, 4, 1")
    a("s_lshl_b32 s3, s28, 1")
    a("v_or_b32 v7, s3, v7")
    a("v_xor_b32 v6, v6, v7")
    a("v_and_b32 v7, 1, v1")
    a("v_lshlrev_b32 v7, 4, v7")
    a("v_lshl_add_u32 v7, v6, 5, v7")
    a("s_lshl_b32 s3, s26, 3")
    a("v_add_u32 v5, s3, v5")
    a("v_lshl_add_u32 v7, v5, 10, v7")
    a("s_lshl_b32 s3, s25, 7")
    a("v_add_u32 v9, s3, v7")
    P.role_branch(name, 8)
    a("s_lshl_b32 s30, s26, 4")
    a("s_add_u32 s30, s30, s29")
    a("v_lshrrev_b32 v5, 3, v1")
    a("v_add_u32 v5, s30, v5")
    a("v_and_b32 v6, 7, v1")
    a("v_lshlrev_b32 v6, 4, v6")
    a("s_lshl_b32 s30, s25, 7")
    a("v_add_u32 v12, s30, v6")
    a("v_lshl_add_u32 v10, v5, 10, v12")
    a("v_add_u32 v11, 0x2000, v10")
    for p in range(2):
        a("buffer_load_dwordx4 %s, v%d, s[20:23], 0 offen" % (vr(96 + p * 4), 10 + p))
    if which == 4:
        a("buffer_load_dwordx4 %s, v12, s[60:63], 0 offen" % vr(104))
    P.la_pattern(13)
    a("s_mul_i32 s3, s27, %d" % (32 * 256))
    for ks in range(4):
        a("v_add_u32 v%d, s3, v%d" % (13 + ks, 13 + ks))
    a("v_lshrrev_b32 v5, 2, v2")
    a("v_and_b32 v6, 3, v2")
    a("v_lshl_add_u32 v7, v3, 3, v5")
    a("v_lshlrev_b32 v7, 7, v7")
    a("v_lshl_add_u32 v7, v6, 3, v7")
    a("v_add_u32 v7, %d, v7" % P.BOFF)
    a("v_lshrrev_b32 v5, 1, v5")
    a("v_and_b32 v6, 1, v3")
    a("v_lshl_add_u32 v5, v6, 1, v5")
    a("s_lshl_b32 s3, s28, 1")
    a("v_xor_b32 v6, s3, v5")
    a("v_lshl_add_u32 v17, v6, 5, v7")
    a("v_xor_b32 v6, 1, v6")
    a("v_lshl_add_u32 v18, v6, 5, v7")
    addr_regs = [(20 + i, 13 + i) for i in range(6)]
    ACC = 32
    WS_ = [48, 56]
    AS_ = [64, 72]
    for i in range(16):
        a("v_mov_b32 v%d, 0" % (ACC + i))

    def reads(ks, s):
        L = []
        for t in range(2):
            L.append("ds_read_b128 %s, v%d offset:%d" % (vr(AS_[s] + 4 * t), 20 + ks, t * 16 * 256))
        for j in range(2):
            for h in range(2):
                L.append("ds_read_b64_tr_b16 %s, v%d offset:%d" % (vr(WS_[s] + j * 4 + h * 2, 2), 24 + j, ks * 4096 + h * 512))
        return L

    def compute(ks, s):
        mf = []
        for t in range(2):
            for j in range(2):
                mf.append(mfma(ACC + (t * 2 + j) * 4, WS_[s] + j * 4, AS_[s] + 4 * t))
        return mf, [], []

    P.run(name, 8, addr_regs, reads, compute)
    a("s_waitcnt vmcnt(0)")
    a("s_lshl_b32 s3, s27, 5")
    a("v_add_u32 v4, s3, v2")
    a("v_mul_u32_u24 v4, 272, v4")
    a("v_lshl_add_u32 v4, v3, 4, v4")
    a("s_lshl_b32 s3, s28, 7")
    a("v_add_u32 v4, s3, v4")
    a("s_barrier")
    for t in range(2):
        for j in range(2):
            a("ds_write_b128 v4, %s offset:%d" % (vr(ACC + (t * 2 + j) * 4), t * 16 * 272 + j * 64))
    a("v_lshrrev_b32 v5, 3, v1")
    a("s_lshl_b32 s3, s26, 4")
    a("v_add_u32 v5, s3, v5")
    a("v_mul_u32_u24 v5, 272, v5")
    a("v_and_b32 v6, 7, v1")
    a("v_lshl_add_u32 v5, v6, 5, v5")
    a("s_waitcnt lgkmcnt(0)")
    a("s_barrier")
    for p in range(2):
        a("ds_read_b128 %s, v5 offset:%d" % (vr(48 + p * 8), p * 8 * 272))
        a("ds_read_b128 %s, v5 offset:%d" % (vr(52 + p * 8), p * 8 * 272 + 16))
    if which == 4:
        for i in range(4):
            a("v_lshlrev_b32 v%d, 16, v%d" % (72 + 2 * i, 104 + i))
            a("v_and_b32 v%d, 0xffff0000, v%d" % (73 + 2 * i, 104 + i))
    a("s_waitcnt lgkmcnt(0)")
    for p in range(2):
        for i in range(4):
            a("v_lshlrev_b32 v%d, 16, v%d" % (64 + 2 * i, 96 + p * 4 + i))
            a("v_and_b32 v%d, 0xffff0000, v%d" % (65 + 2 * i, 96 + p * 4 + i))
        for i in range(4):
            a("v_pk_add_f32 %s, %s, %s" % (vr(48 + p * 8 + 2 * i, 2), vr(48 + p * 8 + 2 * i, 2), vr(64 + 2 * i, 2)))
        if which == 4:
            for i in range(4):
                a("v_pk_add_f32 %s, %s, %s" % (vr(48 + p * 8 + 2 * i, 2), vr(48 + p * 8 + 2 * i, 2), vr(72 + 2 * i, 2)))
        for i in range(4):
            a("v_cvt_pk_bf16_f32 v%d, v%d, v%d" % (96 + p * 4 + i, 48 + p * 8 + 2 * i, 49 + p * 8 + 2 * i))
        a("buffer_store_dwordx4 %s, v%d, s[36:39], 0 offen%s" % (vr(96 + p * 4), 10 + p, STF))
    a.stamp_dump()
    a.label(done)
    a("s_endpgm")
    P.loader(2)
    return name, 112, 112, P.BUFSZ * P.NBUF


def gen_k3(a):
    name = "k3_w1_kernel"
    kernel_head(a, name)
    done = "L_k3_done"
    common_prologue(a, 256, done)
    map16(a)
    srd(a, 12, P_WS, 2048 * 512 * 2, WS_H)
    srd(a, 16, P_W1, 512 * 1792 * 2)
    srd(a, 20, P_WS, 2048 * 1792 * 2, WS_HID)
    srd(a, 36, P_B1, 1792 * 2)
    P = Pipe(a, 512, 64, 3, 128, 1024, 224, 3584, 4, 4, [9, 10, 11, 12], 0)
    a("s_lshl_b32 s27, s24, 7")
    a("s_mul_i32 s30, s25, 224")
    P.a_pattern(8, 27)
    for t in range(4):
        d = 9 + t
        a("s_lshl_b32 s3, s26, 6")
        a("s_add_u32 s3, s3, %d" % (t * 256))
        a("v_add_u32 v13, s3, v1")
        a("v_mul_u32_u24 v14, 2341, v13")
        a("v_lshrrev_b32 v14, 15, v14")
        a("v_mul_u32_u24 v15, 14, v14")
        a("v_sub_u32 v15, v13, v15")
        a("v_lshrrev_b32 v16, 1, v15")
        a("v_and_b32 v15, 1, v15")
        a("v_bfe_u32 v13, v14, 3, 1")
        a("v_lshlrev_b32 v13, 2, v13")
        a("v_sub_u32 v16, v16, v13")
        a("v_add_u32 v16, 7, v16")
        mod_wrap(a, 16, 7, 13)
        a("v_lshlrev_b32 v16, 5, v16")
        a("v_lshl_add_u32 v16, v15, 4, v16")
        a("v_mul_u32_u24 v14, 3584, v14")
        a("v_add3_u32 v%d, v14, v16, s30" % d)
    P.role_branch("k3", 8)
    a("v_lshlrev_b32 v5, 3, v3")
    a("v_add_u32 v5, s30, v5")
    for jp in range(7):
        a("buffer_load_dwordx2 %s, v5, s[36:39], 0 offen offset:%d" % (vr(200 + 2 * jp, 2), jp * 32))
    a("s_lshl_b32 s28, s26, 5")
    a("s_add_u32 s28, s28, s27")
    P.la_pattern(13)
    a("s_mul_i32 s3, s26, %d" % (32 * 128))
    a("v_add_u32 v13, s3, v13")
    a("v_add_u32 v14, s3, v14")
    a("v_lshrrev_b32 v5, 2, v2")
    a("v_and_b32 v6, 3, v2")
    a("v_lshl_add_u32 v5, v3, 3, v5")
    a("v_mul_u32_u24 v5, 224, v5")
    a("v_lshl_add_u32 v5, v6, 3, v5")
    a("v_add_u32 v5, %d, v5" % P.BOFF)
    a("v_and_b32 v6, 1, v3")
    a("v_lshl_add_u32 v15, v6, 7, v5")
    a("v_mul_u32_u24 v7, 96, v6")
    a("v_sub_u32 v16, v5, v7")
    a("v_lshlrev_b32 v6, 2, v6")
    a("v_add_u32 v7, s26, v6")
    mod_wrap(a, 7, 7, 17)
    a("v_lshl_add_u32 v17, v7, 5, v5")
    a("s_add_u32 s3, s26, 4")
    a("s_min_u32 s3, s3, 6")
    a("v_add_u32 v7, s3, v6")
    mod_wrap(a, 7, 7, 18)
    a("v_lshl_add_u32 v18, v7, 5, v5")
    addr_regs = [(20 + i, 13 + i) for i in range(6)]
    ACC = 32
    WS_ = [96, 132]
    AS_ = [168, 176]
    ST = 184
    SQ = 228
    for i in range(16):
        a("v_mov_b32 v%d, 0" % (SQ + i))
    a("v_mov_b32 v26, 0x3f803f80")
    for i in range(4):
        a("v_mov_b32 v%d, 0x3f803f80" % (188 + i))
    for i in range(64):
        a("v_mov_b32 v%d, 0" % (ACC + i))
    for i in range(4):
        a("v_mov_b32 v%d, 0" % (ST + i))

    def reads(ks, s):
        L = []
        for t in range(2):
            L.append("ds_read_b128 %s, v%d offset:%d" % (vr(AS_[s] + 4 * t), 20 + ks, t * 16 * 128))
        for jp in range(7):
            for h in range(2):
                L.append("ds_read_b64_tr_b16 %s, v%d offset:%d" % (vr(WS_[s] + jp * 4 + h * 2, 2), 22 if jp < 3 else 23, ks * 7168 + h * 896 + jp * 32))
        for e in range(2):
            for h in range(2):
                L.append("ds_read_b64_tr_b16 %s, v%d offset:%d" % (vr(WS_[s] + 28 + e * 4 + h * 2, 2), 24 + e, ks * 7168 + h * 896))
        return L

    def compute(ks, s):
        mf = []
        for jp in range(7):
            for t in range(2):
                mf.append(mfma(ACC + t * 28 + jp * 4, WS_[s] + jp * 4, AS_[s] + 4 * t))
        mf.append(mfma(88, WS_[s] + 28, 188))
        mf.append(mfma(92, WS_[s] + 32, 188))
        for t in range(2):
            mf.append(mfma(SQ + 8 * t, 188, AS_[s] + 4 * t))
            mf.append(mfma(SQ + 8 * t + 4, AS_[s] + 4 * t, AS_[s] + 4 * t))
        return mf, [], []

    P.run("k3", 8, addr_regs, reads, compute)
    a("s_waitcnt vmcnt(0)")
    stats_extract(a, SQ, ST, 2)
    a("v_mov_b32 v4, %s" % f32hex(1.0 / 512))
    a("v_mov_b32 v5, %s" % f32hex(1e-5))
    for t in range(2):
        s_, q_ = ST + 2 * t, ST + 2 * t + 1
        a("v_mul_f32 v%d, v%d, v4" % (s_, s_))
        a("v_mul_f32 v%d, v%d, v4" % (q_, q_))
        a("v_fma_f32 v%d, -v%d, v%d, v%d" % (q_, s_, s_, q_))
        a("v_max_f32 v%d, 0, v%d" % (q_, q_))
        a("v_add_f32 v6, v%d, v5" % q_)
        a("v_rcp_f32 v7, v6")
        a("v_rsq_f32 v6, v6")
        a("s_nop 0")
        a("v_fma_f32 v7, v%d, v7, v5" % q_)
        a("v_rsq_f32 v7, v7")
        a("s_nop 0")
        a("v_mul_f32 v%d, v6, v7" % (218 + 4 * t))
        a("v_mul_f32 v%d, v6, v7" % (219 + 4 * t))
        a("v_mul_f32 v%d, v%d, v%d" % (216 + 4 * t, s_, 218 + 4 * t))
        a("v_mul_f32 v%d, v%d, v%d" % (217 + 4 * t, s_, 218 + 4 * t))
    a.stamp()
    CS = 131072
    XS = 32768
    a("v_lshlrev_b32 v6, 4, v3")
    a("v_add_u32 v6, %d, v6" % CS)
    a("s_lshl_b32 s3, s26, 6")
    a("v_add_u32 v7, s3, v6")
    a("s_add_u32 s3, s26, 4")
    a("s_min_u32 s3, s3, 6")
    a("s_lshl_b32 s3, s3, 6")
    a("v_add_u32 v8, s3, v6")
    a("s_lshl_b32 s3, s26, 13")
    a("s_add_u32 s3, s3, %d" % XS)
    a("v_lshlrev_b32 v9, 4, v1")
    a("v_add_u32 v9, s3, v9")
    for q in range(7):
        a("ds_write_b128 v9, %s offset:%d" % (vr(ACC + 28 + 4 * q), q * 1024))
    a("ds_write_b128 v9, %s offset:%d" % (vr(220), 7 * 1024))
    a("v_cmp_eq_u32 vcc, 0, v2")
    a("s_and_saveexec_b64 s[34:35], vcc")
    a("ds_write_b128 v7, %s" % vr(88))
    a("ds_write_b128 v8, %s" % vr(92))
    a("s_mov_b64 exec, s[34:35]")
    a("s_waitcnt lgkmcnt(0)")
    a("s_barrier")
    a.label("L_k3_gelu")
    a("v_lshlrev_b32 v6, 4, v3")
    a("v_add_u32 v6, %d, v6" % CS)
    for jp in range(7):
        a("ds_read_b128 %s, v6 offset:%d" % (vr(96 + jp * 4), jp * 64))
    a("s_lshl_b32 s31, s26, 1")
    a("s_add_u32 s31, s31, s51")
    a("s_mul_i32 s31, s31, 3840")
    a("s_lshl_b32 s3, s51, 4")
    a("s_add_u32 s28, s28, s3")
    a("s_mov_b32 s32, 3584")
    a("v_mul_u32_u24 v30, 240, v2")
    a("v_lshl_add_u32 v30, v3, 3, v30")
    a("v_add_u32 v30, s31, v30")
    C0 = 0.7978845608028654
    c1 = f32hex(-2.0 * LOG2E * C0)
    c2 = f32hex(-2.0 * LOG2E * C0 * 0.044715)
    a("v_mov_b32 v224, %s" % c1)
    a("v_mov_b32 v225, %s" % c1)
    a("v_mov_b32 v226, %s" % c2)
    a("v_mov_b32 v227, %s" % c2)
    for jp in range(7):
        a("v_lshlrev_b32 v%d, 16, v%d" % (124 + 4 * jp, 200 + 2 * jp))
        a("v_and_b32 v%d, 0xffff0000, v%d" % (125 + 4 * jp, 200 + 2 * jp))
        a("v_lshlrev_b32 v%d, 16, v%d" % (126 + 4 * jp, 201 + 2 * jp))
        a("v_and_b32 v%d, 0xffff0000, v%d" % (127 + 4 * jp, 201 + 2 * jp))
    a("s_waitcnt lgkmcnt(0)")
    a.stamp()
    TB = 152
    prs = [(jp, p) for jp in range(7) for p in range(2)]

    def A_(jp, p):
        return vr(ACC + jp * 4 + 2 * p, 2)

    def T_(jp, p):
        return vr(TB + jp * 4 + 2 * p, 2)

    for (jp, p) in prs:
        a("v_pk_fma_f32 %s, %s, %s, %s neg_lo:[1,0,0] neg_hi:[1,0,0]" % (T_(jp, p), vr(216, 2), vr(96 + jp * 4 + 2 * p, 2), vr(124 + jp * 4 + 2 * p, 2)))
    for (jp, p) in prs:
        a("v_pk_fma_f32 %s, %s, %s, %s" % (A_(jp, p), A_(jp, p), vr(218, 2), T_(jp, p)))
    for (jp, p) in prs:
        a("v_pk_mul_f32 %s, %s, %s" % (T_(jp, p), A_(jp, p), A_(jp, p)))
    for (jp, p) in prs:
        a("v_pk_fma_f32 %s, %s, %s, %s" % (T_(jp, p), T_(jp, p), vr(226, 2), vr(224, 2)))
    for (jp, p) in prs:
        a("v_pk_mul_f32 %s, %s, %s" % (T_(jp, p), T_(jp, p), A_(jp, p)))
    for i in range(28):
        a("v_exp_f32 v%d, v%d" % (TB + i, TB + i))
    for (jp, p) in prs:
        a("v_pk_add_f32 %s, %s, 1.0 op_sel_hi:[1,0]" % (T_(jp, p), T_(jp, p)))
    for i in range(28):
        a("v_rcp_f32 v%d, v%d" % (TB + i, TB + i))
    for (jp, p) in prs:
        a("v_pk_mul_f32 %s, %s, %s" % (A_(jp, p), A_(jp, p), T_(jp, p)))
    for jp in range(7):
        accb = ACC + jp * 4
        T = TB + jp * 4
        a("v_cvt_pk_bf16_f32 v%d, v%d, v%d" % (T, accb, accb + 1))
        a("v_cvt_pk_bf16_f32 v%d, v%d, v%d" % (T + 1, accb + 2, accb + 3))
    for jp in range(7):
        a("ds_write_b64 v30, %s offset:%d" % (vr(TB + jp * 4, 2), jp * 32))
    a.stamp()
    for p in range(4):
        a("v_add_u32 v4, %d, v1" % (p * 64))
        a("v_mul_u32_u24 v5, 2341, v4")
        a("v_lshrrev_b32 v5, 15, v5")
        a("v_mul_u32_u24 v6, 14, v5")
        a("v_sub_u32 v6, v4, v6")
        a("v_lshlrev_b32 v6, 4, v6")
        a("v_mul_u32_u24 v7, 240, v5")
        a("v_add3_u32 v%d, v7, v6, s31" % (32 + p))
        a("v_add_u32 v5, s28, v5")
        a("v_mul_lo_u32 v5, v5, s32")
        a("v_add3_u32 v%d, v5, v6, s30" % (40 + p))
    a("s_waitcnt lgkmcnt(0)")
    for p in range(4):
        a("ds_read_b128 %s, v%d" % (vr(96 + 4 * p), 32 + p))
    for p in range(3):
        a("s_waitcnt lgkmcnt(%d)" % (3 - p))
        a("buffer_store_dwordx4 %s, v%d, s[20:23], 0 offen%s" % (vr(96 + 4 * p), 40 + p, STF))
    a("v_cmp_gt_u32 vcc, 32, v1")
    a("s_and_saveexec_b64 s[34:35], vcc")
    a("s_waitcnt lgkmcnt(0)")
    a("buffer_store_dwordx4 %s, v43, s[20:23], 0 offen%s" % (vr(108), STF))
    a("s_mov_b64 exec, s[34:35]")
    a.stamp()
    a.stamp_dump()
    a.label(done)
    a("s_endpgm")
    def k3_join():
        a("v_lshlrev_b32 v5, 3, v3")
        a("v_add_u32 v5, s30, v5")
        for jp in range(7):
            a("buffer_load_dwordx2 %s, v5, s[36:39], 0 offen offset:%d" % (vr(200 + 2 * jp, 2), jp * 32))
        a("s_lshl_b32 s28, s26, 5")
        a("s_add_u32 s28, s28, s27")
        a("s_lshl_b32 s3, s26, 13")
        a("s_add_u32 s3, s3, %d" % 32768)
        a("v_lshlrev_b32 v9, 4, v1")
        a("v_add_u32 v9, s3, v9")
        a("s_barrier")
        for q in range(7):
            a("ds_read_b128 %s, v9 offset:%d" % (vr(32 + 4 * q), q * 1024))
        a("ds_read_b128 %s, v9 offset:%d" % (vr(216), 7 * 1024))
        a("s_waitcnt vmcnt(0) lgkmcnt(0)")
    P.loader(0, k3_join, "L_k3_gelu")
    return name, 244, 244, 131072 + 512


def main():
    global STAMP, OUT, EXP, STF
    if len(sys.argv) > 1 and sys.argv[1] == "stamp":
        STAMP = True
        OUT = "stamp.s"
        if len(sys.argv) > 2:
            EXP = sys.argv[2]
            OUT = "stamp_%s.s" % EXP
            if "sc1" in EXP:
                STF = " sc1"
            if "nt" in EXP:
                STF = " nt"
            if "both" in EXP:
                STF = " sc0 sc1"
    a = Asm()
    ks = [gen_k1(a), gen_k24(a, 2), gen_k3(a), gen_k24(a, 4)]
    head = open("cdna_kernels/%s.s.ref" % NAME).read().split("; Override launch")[0]
    out = head
    for (name, nv, acc, lds) in ks:
        out += "; @launch kernel=%s grid=(256,1,1) block=(512,1,1) lds=%d\n" % (name, lds)
    out += '.amdgcn_target "amdgcn-amd-amdhsa--gfx950"\n.text\n'
    out += a.text()
    out += "L_code_end:\n"
    out += '.section .rodata,"a"\n'
    for (name, nv, acc, lds) in ks:
        out += ".p2align 6\n" + kernel_desc(name, nv, acc)
    open(OUT, "w").write(out)
    print("wrote", OUT, len(out))


if __name__ == "__main__":
    assert all((sl * 2731) >> 15 == sl // 12 for sl in range(768))
    assert all((sl * 2341) >> 15 == sl // 14 for sl in range(1024))
    main()
```

```python
import sys, struct

NAME = "sequential_preLN__sliding_local_dilated__mixer_channel_mlp__prompt"
OUT = "cdna_kernels/%s.s" % NAME

WS_O = 0
WS_H = 2 * 1024 * 1024
WS_HID = 4 * 1024 * 1024
LOG2E = 1.4426950408889634
STAMP = False
EXP = ""
STF = ""
STREG = list(range(86, 100)) + list(range(52, 60))


def f32hex(x):
    return "0x%08x" % struct.unpack("<I", struct.pack("<f", x))[0]


class Asm:
    def __init__(self):
        self.lines = []
        self.nst = 0
        self.kidx = 0

    def __call__(self, s):
        self.lines.append("    " + s)

    def label(self, s):
        self.lines.append(s + ":")

    def raw(self, s):
        self.lines.append(s)

    def text(self):
        return "\n".join(self.lines) + "\n"

    def stamp(self):
        if not STAMP:
            return
        if self.nst == 0:
            self("s_memrealtime s[100:101]")
            self("s_waitcnt lgkmcnt(0)")
            self("s_mov_b32 s%d, s100" % STREG[-1])
        self("s_memtime s[100:101]")
        self("s_waitcnt lgkmcnt(0)")
        self("s_mov_b32 s%d, s100" % STREG[self.nst])
        self.nst += 1

    def stamp_dump(self):
        if not STAMP:
            return
        self("s_waitcnt vmcnt(0)")
        self.stamp()
        n = self.nst
        self("s_or_b32 s3, s26, s51")
        self("s_cmp_lg_u32 s3, 0")
        self("s_cbranch_scc1 L_st_skip%d" % self.kidx)
        self("s_add_u32 s60, s84, %d" % (12 * 1024 * 1024 + self.kidx * 65536))
        self("s_addc_u32 s61, s85, 0")
        self("s_and_b32 s61, s61, 0xffff")
        self("s_mov_b32 s62, 65536")
        self("s_mov_b32 s63, 0x20000")
        self("s_lshl_b32 s3, s2, 7")
        self("v_mov_b32 v1, s3")
        for i in range(n):
            self("v_mov_b32 v2, s%d" % STREG[i])
            self("buffer_store_dword v2, v1, s[60:63], 0 offen offset:%d" % (4 * i))
        self("s_memrealtime s[100:101]")
        self("s_waitcnt lgkmcnt(0)")
        self("v_mov_b32 v2, s%d" % STREG[-1])
        self("buffer_store_dword v2, v1, s[60:63], 0 offen offset:120")
        self("v_mov_b32 v2, s100")
        self("buffer_store_dword v2, v1, s[60:63], 0 offen offset:124")
        self.label("L_st_skip%d" % self.kidx)
        self.nst = 0
        self.kidx += 1


def srd(a, d, ptr, nbytes, off=0):
    if off:
        a("s_add_u32 s%d, s%d, %d" % (d, ptr, off))
        a("s_addc_u32 s%d, s%d, 0" % (d + 1, ptr + 1))
        a("s_and_b32 s%d, s%d, 0xffff" % (d + 1, d + 1))
    else:
        a("s_mov_b32 s%d, s%d" % (d, ptr))
        a("s_and_b32 s%d, s%d, 0xffff" % (d + 1, ptr + 1))
    a("s_mov_b32 s%d, %d" % (d + 2, nbytes))
    a("s_mov_b32 s%d, 0x00020000" % (d + 3))


def kernel_head(a, name):
    a.raw(".globl %s" % name)
    a.raw(".p2align 8")
    a.raw(".type %s,@function" % name)
    a.label(name)


def kernel_desc(name, nvgpr, accum, nsgpr=102):
    return """.amdhsa_kernel %s
  .amdhsa_next_free_vgpr %d
  .amdhsa_next_free_sgpr %d
  .amdhsa_accum_offset %d
  .amdhsa_group_segment_fixed_size 0
  .amdhsa_kernarg_size 88
  .amdhsa_user_sgpr_count 2
  .amdhsa_user_sgpr_kernarg_segment_ptr 1
  .amdhsa_system_sgpr_workgroup_id_x 1
.end_amdhsa_kernel
""" % (name, nvgpr, nsgpr, accum)


def vr(b, n=4):
    return "v[%d:%d]" % (b, b + n - 1)


P_X, P_WQKV, P_WO, P_W1, P_B1, P_W2, P_B2, P_OUT, P_WS = 64, 66, 68, 72, 74, 76, 78, 80, 84


def common_prologue(a, nwg, done):
    if "half" in EXP:
        nwg = 128
    if "quarter" in EXP:
        nwg = 64
    a("s_cmp_ge_u32 s2, %d" % nwg)
    a("s_cbranch_scc1 %s" % done)
    a("s_load_dwordx16 s[64:79], s[0:1], 0")
    a("s_load_dwordx4 s[80:83], s[0:1], 64")
    a("s_load_dwordx2 s[84:85], s[0:1], 80")
    a("v_and_b32 v1, 63, v0")
    a("v_lshrrev_b32 v4, 6, v0")
    a("v_and_b32 v2, 15, v0")
    a("v_bfe_u32 v3, v0, 4, 2")
    a("v_readfirstlane_b32 s26, v4")
    a("s_waitcnt lgkmcnt(0)")
    a("s_lshr_b32 s51, s26, 2")
    a("s_and_b32 s26, s26, 3")
    a.stamp()


def map16(a):
    a("s_bfe_u32 s24, s2, 0x20001")
    a("s_lshl_b32 s24, s24, 2")
    a("s_lshr_b32 s25, s2, 6")
    a("s_add_u32 s24, s24, s25")
    a("s_and_b32 s25, s2, 1")
    a("s_lshl_b32 s25, s25, 3")
    a("s_bfe_u32 s3, s2, 0x30003")
    a("s_add_u32 s25, s25, s3")


def map32x8(a):
    a("s_and_b32 s24, s2, 7")
    a("s_lshl_b32 s24, s24, 2")
    a("s_lshr_b32 s25, s2, 6")
    a("s_add_u32 s24, s24, s25")
    a("s_bfe_u32 s25, s2, 0x30003")


def merge3(mf, rd, va, tail):
    out = []
    if "novalu" in EXP:
        va = []
    if "nord" in EXP:
        rd = []
    if "nomf" in EXP:
        mf = ["s_nop 0"]
        tail = []
    if "trhalf" in EXP:
        rd = [r for i, r in enumerate(rd) if "tr" not in r or i % 2 == 0]
    if "nob128" in EXP:
        rd = [r for r in rd if "b128" not in r]
    n = len(mf)
    ri = vi = 0
    for i, m in enumerate(mf):
        out.append(m)
        rt = (len(rd) * (i + 1) + n - 1) // n
        vt = (len(va) * (i + 1) + n - 1) // n
        while ri < rt:
            out.append(rd[ri]); ri += 1
        while vi < vt:
            out.append(va[vi]); vi += 1
    out += rd[ri:] + va[vi:] + tail
    return out


def interleave(mf, va, lead=0):
    out = []
    n = len(mf)
    per = -(-len(va) // max(n, 1))
    vi = 0
    for i, m in enumerate(mf):
        out.append(m)
        for _ in range(per):
            if vi < len(va):
                out.append(va[vi])
                vi += 1
    out += va[vi:]
    return out


class Pipe:
    def __init__(self, a, K, KC, NBUF, RA, A_RS, BROW, B_RS, nA, nB, BPAT, bt_adv):
        self.a = a
        self.K, self.KC, self.NBUF = K, KC, NBUF
        self.NC = K // KC
        self.KSC = KC // 32
        self.AROW = KC * 2
        self.RA, self.A_RS, self.BROW, self.B_RS = RA, A_RS, BROW, B_RS
        self.nA, self.nB = nA, nB
        self.BOFF = nA * 4 * 1024
        self.BUFSZ = (nA + nB) * 4 * 1024
        self.BPAT = BPAT
        self.bt_adv = bt_adv
        self.rows_per_instr = 1024 // self.AROW
        self.ND = nA + nB

    def a_pattern(self, dst, rowbase_s):
        a = self.a
        rpi = self.rows_per_instr
        if rpi == 8:
            a("v_lshrrev_b32 v5, 3, v1")
            a("v_and_b32 v6, 7, v1")
            a("s_lshl_b32 s3, s26, 2")
            a("v_lshrrev_b32 v7, 1, v5")
            a("v_add_u32 v7, s3, v7")
            a("v_and_b32 v7, 7, v7")
        else:
            a("v_lshrrev_b32 v5, 4, v1")
            a("v_and_b32 v6, 15, v1")
            a("s_lshl_b32 s3, s26, 2")
            a("v_add_u32 v7, s3, v5")
        a("v_xor_b32 v6, v6, v7")
        a("s_mul_i32 s3, s26, %d" % rpi)
        a("s_add_u32 s3, s3, s%d" % rowbase_s)
        a("v_add_u32 v5, s3, v5")
        a("s_mov_b32 s3, %d" % self.A_RS)
        a("v_mul_lo_u32 v5, v5, s3")
        a("v_lshl_add_u32 v%d, v6, 4, v5" % dst)

    def la_pattern(self, dst):
        a = self.a
        if self.rows_per_instr == 8:
            a("v_lshrrev_b32 v5, 1, v2")
        else:
            a("v_mov_b32 v5, v2")
        a("v_mul_u32_u24 v6, %d, v2" % self.AROW)
        for ks in range(self.KSC):
            a("v_add_u32 v7, %d, v3" % (4 * ks))
            a("v_xor_b32 v7, v7, v5")
            a("v_lshl_add_u32 v%d, v7, 4, v6" % (dst + ks))

    def role_branch(self, name, APAT, *largs):
        self.name, self.APAT = name, APAT
        self.init_state()
        self.a("s_cmp_eq_u32 s51, 0")
        self.a("s_cbranch_scc1 L_%s_compute" % name)
        self.loader(*largs)
        self.a.label("L_%s_compute" % name)

    def init_state(self):
        a = self.a
        a("s_mov_b32 s40, 0")
        a("s_mov_b32 s41, 0")
        if "norot" in EXP or self.RA != 160:
            a("s_mov_b32 s42, 0")
            a("s_mov_b32 s43, 0")
        else:
            a("s_add_u32 s42, s24, s25")
            if self.NC & (self.NC - 1) == 0:
                a("s_and_b32 s42, s42, %d" % (self.NC - 1))
            else:
                a("s_mul_i32 s43, s42, %d" % ((65536 + self.NC - 1) // self.NC))
                a("s_lshr_b32 s43, s43, 16")
                a("s_mul_i32 s43, s43, %d" % self.NC)
                a("s_sub_u32 s42, s42, s43")
            a("s_mul_i32 s43, s42, %d" % (self.KC * self.B_RS))
            a("s_mul_i32 s42, s42, %d" % (self.KC * 2))
        a("s_mov_b32 s44, 0")
        a("s_lshl_b32 s46, s26, 10")

    def dma(self, pat, srd_, so):
        if "contig" in EXP:
            self.cnt = getattr(self, "cnt", 0) + 1
            self.a("s_lshl_b32 s49, s40, 15")
            self.a("s_add_u32 s49, s49, %d" % ((self.cnt % 32) * 4096 % 262144))
            self.a("s_lshl_b32 s50, s2, 11")
            self.a("s_add_u32 s49, s49, s50")
            self.a("v_lshlrev_b32 v5, 4, v0")
            self.a("buffer_load_dwordx4 v5, s[%d:%d], s49 offen lds" % (srd_, srd_ + 3))
        elif "vgpr" in EXP:
            self.rot = (getattr(self, "rot", 0) + 1) % 8
            self.a("buffer_load_dwordx4 %s, v%d, s[%d:%d], s%d offen" % (vr(64 + 4 * self.rot), pat, srd_, srd_ + 3, so))
        else:
            self.a("buffer_load_dwordx4 v%d, s[%d:%d], s%d offen lds" % (pat, srd_, srd_ + 3, so))

    def issue_chunk(self, APAT):
        a = self.a
        a("s_add_u32 s47, s41, s46")
        for t in range(self.nA):
            a("s_add_u32 m0, s47, %d" % (t * 4096))
            if isinstance(APAT, list):
                a("s_nop 0")
                self.dma(APAT[t], 12, 42)
            else:
                a("s_add_u32 s48, s42, %d" % (t * 4 * self.rows_per_instr * self.A_RS))
                self.dma(APAT, 12, 48)
        for t in range(self.nB):
            a("s_add_u32 m0, s47, %d" % (self.BOFF + t * 4096))
            a("s_add_u32 s48, s43, %d" % (t * self.bt_adv))
            self.dma(self.BPAT[t], 16, 48)
        a("s_add_u32 s41, s41, %d" % self.BUFSZ)
        a("s_cmp_ge_u32 s41, %d" % (self.BUFSZ * self.NBUF))
        a("s_cselect_b32 s41, 0, s41")
        a("s_add_u32 s42, s42, %d" % (self.KC * 2))
        a("s_add_u32 s43, s43, %d" % (self.KC * self.B_RS))
        a("s_cmp_ge_u32 s42, %d" % (self.K * 2))
        a("s_cselect_b32 s42, 0, s42")
        a("s_cselect_b32 s43, 0, s43")

    def run(self, name, APAT, addr_regs, reads, compute):
        a = self.a
        NB, NC, KSC, ND = self.NBUF, self.NC, self.KSC, self.ND
        for (cur, base) in addr_regs:
            a("v_mov_b32 v%d, v%d" % (cur, base))
        a.stamp()
        a("s_barrier")
        a.stamp()
        for l in reads(0, 0):
            a(l)
        a("s_waitcnt lgkmcnt(0)")
        a.label("L_%s_loop" % name)
        for ks in range(KSC - 1):
            mf, va, tail = compute(ks, ks & 1)
            for l in merge3(mf, reads(ks + 1, (ks + 1) & 1), va, tail):
                a(l)
            a("s_waitcnt lgkmcnt(0)")
        a("s_barrier")
        a("s_add_u32 s44, s44, %d" % self.BUFSZ)
        a("s_cmp_ge_u32 s44, %d" % (self.BUFSZ * NB))
        a("s_cselect_b32 s44, 0, s44")
        for (cur, base) in addr_regs:
            a("v_add_u32 v%d, s44, v%d" % (cur, base))
        mf, va, tail = compute(KSC - 1, (KSC - 1) & 1)
        for l in merge3(mf, reads(0, 0), va, tail):
            a(l)
        a("s_waitcnt lgkmcnt(0)")
        a("s_add_u32 s40, s40, 1")
        a("s_cmp_lt_u32 s40, %d" % NC)
        a("s_cbranch_scc1 L_%s_loop" % name)
        a("s_nop 7")
        a("s_nop 7")
        a.stamp()

    def loader(self, n_epi_barriers, extra=None, join=None):
        a = self.a
        name, APAT = self.name, self.APAT
        NB, NC, KSC, ND = self.NBUF, self.NC, self.KSC, self.ND
        a.label("L_%s_loader" % name)
        for c in range(2):
            self.issue_chunk(APAT)
        a("s_waitcnt vmcnt(%d)" % ND)
        a("s_barrier")
        for c in range(2, NB):
            self.issue_chunk(APAT)
        a.label("L_%s_lloop" % name)
        a("s_cmp_lt_u32 s40, %d" % (NC - NB + 1))
        a("s_cbranch_scc1 L_%s_wfull" % name)
        for r in range(NB - 3, -1, -1):
            if NC - 2 - r >= 0:
                a("s_cmp_eq_u32 s40, %d" % (NC - 2 - r))
                a("s_cbranch_scc0 L_%s_w%d" % (name, r))
                a("s_waitcnt vmcnt(%d)" % (ND * r))
                a("s_branch L_%s_wdone" % name)
                a.label("L_%s_w%d" % (name, r))
        a("s_waitcnt vmcnt(0)")
        a("s_branch L_%s_wdone" % name)
        a.label("L_%s_wfull" % name)
        a("s_waitcnt vmcnt(%d)" % (ND * (NB - 2)))
        a.label("L_%s_wdone" % name)
        a("s_barrier")
        a("s_cmp_lt_u32 s40, %d" % (NC - NB))
        a("s_cbranch_scc0 L_%s_noissue" % name)
        self.issue_chunk(APAT)
        a.label("L_%s_noissue" % name)
        a("s_add_u32 s40, s40, 1")
        a("s_cmp_lt_u32 s40, %d" % NC)
        a("s_cbranch_scc1 L_%s_lloop" % name)
        if extra:
            extra()
        for i in range(n_epi_barriers):
            a("s_barrier")
        if join:
            a("s_waitcnt vmcnt(0)")
            a("s_branch %s" % join)
        else:
            a("s_endpgm")


def mfma(d, A, B):
    return "v_mfma_f32_16x16x32_bf16 %s, %s, %s, %s" % (vr(d), vr(A), vr(B), vr(d))


def reduce_groups(a, regs, tmp, addr16, addr32):
    for addr in (addr16, addr32):
        for i, r in enumerate(regs):
            a("ds_bpermute_b32 v%d, v%d, v%d" % (tmp + i, addr, r))
        a("s_waitcnt lgkmcnt(0)")
        for i, r in enumerate(regs):
            a("v_add_f32 v%d, v%d, v%d" % (r, r, tmp + i))


def stats_extract(a, SQ, ST, nt):
    a("v_and_b32 v4, 3, v2")
    a("v_cmp_eq_u32 s[36:37], 1, v4")
    a("v_cmp_eq_u32 s[38:39], 2, v4")
    a("v_cmp_eq_u32 vcc, 3, v4")
    a("v_lshrrev_b32 v4, 2, v2")
    a("v_lshl_add_u32 v4, v4, 4, v2")
    a("v_lshlrev_b32 v4, 2, v4")
    for t in range(nt):
        g = SQ + 8 * t + 4
        a("v_cndmask_b32 v%d, v%d, v%d, s[36:37]" % (g, g, g + 1))
        a("v_cndmask_b32 v%d, v%d, v%d, s[38:39]" % (g, g, g + 2))
        a("v_cndmask_b32 v%d, v%d, v%d, vcc" % (g, g, g + 3))
        a("ds_bpermute_b32 v%d, v4, v%d" % (ST + 2 * t + 1, g))
        a("v_mov_b32 v%d, v%d" % (ST + 2 * t, SQ + 8 * t))
    a("s_waitcnt lgkmcnt(0)")


def mod_wrap(a, v, m, tmp):
    a("v_subrev_u32 v%d, %d, v%d" % (tmp, m, v))
    a("v_min_u32 v%d, v%d, v%d" % (v, v, tmp))


def gen_k1(a):
    name = "k1_qkv_attn_kernel"
    kernel_head(a, name)
    done = "L_k1_done"
    common_prologue(a, 256, done)
    map16(a)
    srd(a, 12, P_X, 2048 * 512 * 2)
    srd(a, 16, P_WQKV, 512 * 1536 * 2)
    srd(a, 20, P_WS, 2048 * 512 * 2, WS_O)
    P = Pipe(a, 512, 64, 3, 160, 1024, 192, 3072, 5, 3, [9, 10, 11], 0)
    a("s_lshl_b32 s27, s24, 7")
    a("s_sub_u32 s28, s27, 16")
    a("s_lshl_b32 s30, s25, 6")
    P.a_pattern(8, 28)
    for t in range(3):
        d = 9 + t
        a("s_lshl_b32 s3, s26, 6")
        a("s_add_u32 s3, s3, %d" % (t * 256))
        a("v_add_u32 v12, s3, v1")
        a("v_mul_u32_u24 v13, 2731, v12")
        a("v_lshrrev_b32 v13, 15, v13")
        a("v_mul_u32_u24 v14, 12, v13")
        a("v_sub_u32 v14, v12, v14")
        a("v_lshrrev_b32 v15, 1, v14")
        a("v_and_b32 v14, 1, v14")
        a("v_bfe_u32 v16, v13, 3, 1")
        a("v_sub_u32 v15, v15, v16")
        a("v_add_u32 v15, 6, v15")
        mod_wrap(a, 15, 6, 16)
        a("v_lshrrev_b32 v16, 1, v15")
        a("v_and_b32 v15, 1, v15")
        a("v_lshlrev_b32 v15, 5, v15")
        a("v_lshl_add_u32 v15, v14, 4, v15")
        a("v_lshl_add_u32 v15, v16, 10, v15")
        a("v_mul_u32_u24 v13, 3072, v13")
        a("v_add3_u32 v%d, v13, v15, s30" % d)
    for t in range(1, 5):
        a("v_add_u32 v%d, %d, v8" % (203 + t, t * 32 * 1024))
    def prefetch():
        srd(a, 52, P_WO, 512 * 512 * 2)
        a("v_lshlrev_b32 v4, 4, v1")
        a("s_lshl_b32 s3, s2, 11")
        a("s_lshl_b32 s56, s26, 9")
        a("s_add_u32 s3, s3, s56")
        a("v_and_b32 v5, 0x1ff, v4")
        a("buffer_load_dwordx4 %s, v5, s[52:55], s3 offen" % vr(64))
        srd(a, 52, P_W1, 512 * 1792 * 2)
        srd(a, 56, P_W2, 512 * 1792 * 2)
        a("s_mul_i32 s3, s2, 7168")
        a("s_mul_i32 s60, s26, 1792")
        a("s_add_u32 s3, s3, s60")
        a("buffer_load_dwordx4 %s, v4, s[52:55], s3 offen" % vr(68))
        a("buffer_load_dwordx4 %s, v4, s[52:55], s3 offen offset:768" % vr(72))
        a("buffer_load_dwordx4 %s, v4, s[56:59], s3 offen" % vr(76))
        a("buffer_load_dwordx4 %s, v4, s[56:59], s3 offen offset:768" % vr(80))
        if "nocode" not in EXP:
            a("s_getpc_b64 s[56:57]")
            a.label("L_pc_here")
            a("s_add_u32 s56, s56, k2_wo_kernel - L_pc_here")
            a("s_addc_u32 s57, s57, 0")
            a("s_lshr_b32 s3, s2, 3")
            a("s_lshl_b32 s3, s3, 2")
            a("s_add_u32 s3, s3, s26")
            a("s_lshl_b32 s3, s3, 10")
            a("v_add_u32 v5, s3, v4")
            a("v_min_u32 v5, L_code_end - k2_wo_kernel - 16, v5")
            a("global_load_dwordx4 %s, v5, s[56:57]" % vr(84))
    P.role_branch("k1", [8, 204, 205, 206, 207], 2, prefetch if "nopf" not in EXP else None, "L_k1_attn")
    P.la_pattern(12)
    a("v_lshrrev_b32 v5, 2, v2")
    a("v_and_b32 v6, 3, v2")
    a("v_lshl_add_u32 v5, v3, 3, v5")
    a("v_mul_u32_u24 v5, 192, v5")
    a("v_lshl_add_u32 v5, v6, 3, v5")
    a("v_add_u32 v5, %d, v5" % P.BOFF)
    a("v_and_b32 v6, 1, v3")
    a("v_lshl_add_u32 v14, v6, 5, v5")
    a("v_mul_u32_u24 v7, 160, v6")
    a("v_sub_u32 v15, 160, v7")
    a("v_add_u32 v15, v15, v5")
    a("s_add_u32 s3, s26, 2")
    a("v_add_u32 v7, s3, v6")
    mod_wrap(a, 7, 6, 16)
    a("v_lshl_add_u32 v16, v7, 5, v5")
    a("s_and_b32 s3, s26, 1")
    a("v_add_u32 v7, s3, v6")
    a("v_lshl_add_u32 v17, v7, 5, v5")
    addr_regs = [(18, 12), (19, 13), (20, 14), (21, 15), (22, 16), (23, 17)]
    ACC = 32
    WS_ = [88, 120]
    AS_ = [152, 164]
    ST = 176
    SQ = 208
    ONES = 232
    for i in range(24):
        a("v_mov_b32 v%d, 0" % (SQ + i))
    for i in range(4):
        a("v_mov_b32 v%d, 0x3f803f80" % (ONES + i))
    a("v_mov_b32 v24, 0x3f803f80")
    a("v_cmp_eq_u32 s[34:35], 0, v2")
    for i in range(56):
        a("v_mov_b32 v%d, 0" % (ACC + i))
    for i in range(6):
        a("v_mov_b32 v%d, 0" % (ST + i))
    arow = [16, 32, 0]
    a("s_mul_i32 s3, s26, %d" % (32 * 128))
    a("v_add_u32 v25, s3, v12")
    a("v_add_u32 v26, s3, v13")
    addr_regs += [(28, 25), (29, 26)]

    def reads(ks, s):
        L = []
        for t in range(2):
            L.append("ds_read_b128 %s, v%d offset:%d" % (vr(AS_[s] + 4 * t), 28 + ks, arow[t] * 128))
        L.append("ds_read_b128 %s, v%d" % (vr(AS_[s] + 8), 18 + ks))
        for jp in range(6):
            for h in range(2):
                off = ks * 6144 + h * 768 + (jp * 32 if jp < 5 else 0)
                L.append("ds_read_b64_tr_b16 %s, v%d offset:%d" % (vr(WS_[s] + jp * 4 + h * 2, 2), 20 if jp < 5 else 21, off))
        for e in range(2):
            for h in range(2):
                L.append("ds_read_b64_tr_b16 %s, v%d offset:%d" % (vr(WS_[s] + 24 + e * 4 + h * 2, 2), 22 + e, ks * 6144 + h * 768))
        return L

    def compute(ks, s):
        mf = []
        for jp in range(6):
            for t in range(2):
                mf.append(mfma(ACC + t * 24 + jp * 4, WS_[s] + jp * 4, AS_[s] + 4 * t))
        pre = []
        for t in (2, 0, 1):
            pre.append(mfma(SQ + 8 * t, ONES, AS_[s] + 4 * t))
            pre.append(mfma(SQ + 8 * t + 4, AS_[s] + 4 * t, AS_[s] + 4 * t))
        mf = pre + mf
        va = []
        tail = []
        for i in range(4):
            r = AS_[s] + 8 + i
            tail.append("v_cndmask_b32 v%d, v%d, v24, s[34:35]" % (r, r))
        return mf, va, tail + ["s_nop 1", mfma(80, WS_[s] + 24, AS_[s] + 8), mfma(84, WS_[s] + 28, AS_[s] + 8)]

    P.run("k1", [8, 204, 205, 206, 207], addr_regs, reads, compute)
    stats_extract(a, SQ, ST, 3)
    a("v_mov_b32 v4, %s" % f32hex(1.0 / 512))
    a("v_mov_b32 v5, %s" % f32hex(1e-5))
    for t in range(3):
        s_, q_ = ST + 2 * t, ST + 2 * t + 1
        a("v_mul_f32 v%d, v%d, v4" % (s_, s_))
        a("v_mul_f32 v%d, v%d, v4" % (q_, q_))
        a("v_fma_f32 v%d, -v%d, v%d, v%d" % (q_, s_, s_, q_))
        a("v_max_f32 v%d, 0, v%d" % (q_, q_))
        a("v_add_f32 v%d, v%d, v5" % (q_, q_))
        a("v_rsq_f32 v%d, v%d" % (q_, q_))
        a("s_nop 0")
        a("v_mul_f32 v%d, v%d, v%d" % (192 + 4 * t, s_, q_))
        a("v_mul_f32 v%d, v%d, v%d" % (193 + 4 * t, s_, q_))
        a("v_mov_b32 v%d, v%d" % (194 + 4 * t, q_))
        a("v_mov_b32 v%d, v%d" % (195 + 4 * t, q_))
    CS = 131072
    a("v_lshlrev_b32 v6, 4, v3")
    a("v_add_u32 v7, %d, v6" % CS)
    a("s_add_u32 s36, s26, 2")
    a("s_lshl_b32 s36, s36, 6")
    a("v_add_u32 v8, s36, v7")
    a("s_and_b32 s37, s26, 1")
    a("s_lshl_b32 s37, s37, 6")
    a("v_add_u32 v9, s37, v7")
    a("s_and_saveexec_b64 s[36:37], s[34:35]")
    a("ds_write_b128 v8, %s" % vr(80))
    a("ds_write_b128 v9, %s" % vr(84))
    a("s_mov_b64 exec, s[36:37]")
    a("s_waitcnt lgkmcnt(0)")
    a("s_barrier")
    for jp in range(6):
        a("ds_read_b128 %s, v7 offset:%d" % (vr(88 + jp * 4), jp * 64))
    a("ds_read_b128 %s, v8" % vr(112))
    QB, KB, VB = 0, 128 * 144, 128 * 144 + 144 * 144
    a("s_lshl_b32 s36, s26, 5")
    a("v_add_u32 v10, s36, v2")
    a("v_mul_u32_u24 v10, 144, v10")
    a("v_add_u32 v10, v10, v6")
    a("v_mul_u32_u24 v11, 144, v2")
    a("v_add_u32 v11, v11, v6")
    a("s_cmp_lt_u32 s26, 2")
    a("s_mov_b32 s37, %d" % VB)
    a("s_cselect_b32 s36, %d, s37" % KB)
    a("s_and_b32 s37, s26, 1")
    a("s_lshl_b32 s37, s37, 6")
    a("s_add_u32 s36, s36, s37")
    a("v_add_u32 v11, s36, v11")
    a("s_waitcnt lgkmcnt(0)")

    def fix_write(accb, csb, st, addr, off):
        for p in range(2):
            a("v_pk_mul_f32 %s, %s, %s" % (vr(120 + 2 * p, 2), vr(csb + 2 * p, 2), vr(192 + 4 * st, 2)))
        for p in range(2):
            a("v_pk_fma_f32 %s, %s, %s, %s neg_lo:[0,0,1] neg_hi:[0,0,1]" % (vr(accb + 2 * p, 2), vr(accb + 2 * p, 2), vr(194 + 4 * st, 2), vr(120 + 2 * p, 2)))
        a("ds_write_b128 v%d, %s offset:%d" % (addr, vr(accb), off))

    for t in range(2):
        for jp in range(6):
            regbase = [QB, KB + 16 * 144, VB + 16 * 144][jp >> 1]
            fix_write(ACC + t * 24 + jp * 4, 88 + jp * 4, t, 10, regbase + t * 16 * 144 + (jp & 1) * 64)
    fix_write(80, 112, 2, 11, 0)
    a("s_waitcnt lgkmcnt(0)")
    a("s_barrier")
    a.stamp()
    a.label("L_k1_attn")
    a("v_bfe_u32 v4, v0, 1, 7")
    a("v_lshrrev_b32 v5, 8, v0")
    a("v_and_b32 v7, 1, v0")
    a("v_mul_u32_u24 v6, 144, v4")
    a("v_lshl_add_u32 v6, v5, 6, v6")
    a("v_lshl_add_u32 v6, v7, 5, v6")
    for i in range(2):
        a("ds_read_b128 %s, v6 offset:%d" % (vr(8 + 4 * i), QB + 16 * i))
    for w in range(8):
        for i in range(2):
            a("ds_read_b128 %s, v6 offset:%d" % (vr(64 + 8 * w + 4 * i), KB + 16 * 144 - 288 * w + 16 * i))
    a("v_mov_b32 v40, %s" % f32hex(0.25 * LOG2E))
    a("v_mov_b32 v41, %s" % f32hex(0.25 * LOG2E))
    a("s_waitcnt lgkmcnt(15)")
    a("s_waitcnt lgkmcnt(8)")
    for w in range(8):
        for i in range(2):
            a("ds_read_b128 %s, v6 offset:%d" % (vr(128 + 8 * w + 4 * i), VB + 16 * 144 - 288 * w + 16 * i))
        if w == 2:
            a("s_waitcnt lgkmcnt(6)")
    for i in range(4):
        a("v_pk_mul_f32 %s, %s, %s" % (vr(8 + 2 * i, 2), vr(8 + 2 * i, 2), vr(40, 2)))
    for w in range(8):
        kb = 64 + 8 * w
        a("v_pk_mul_f32 %s, %s, %s" % (vr(42 + 2 * w, 2), vr(8, 2), vr(kb, 2)))
    for i in range(1, 4):
        for w in range(8):
            kb = 64 + 8 * w
            a("v_pk_fma_f32 %s, %s, %s, %s" % (vr(42 + 2 * w, 2), vr(8 + 2 * i, 2), vr(kb + 2 * i, 2), vr(42 + 2 * w, 2)))
    for w in range(8):
        a("v_add_f32 v%d, v%d, v%d" % (24 + w, 42 + 2 * w, 43 + 2 * w))
    a("s_nop 1")
    for w in range(8):
        a("v_add_f32_dpp v%d, v%d, v%d quad_perm:[1,0,3,2] row_mask:0xf bank_mask:0xf" % (42 + w, 24 + w, 24 + w))
    a("v_add_u32 v32, s27, v4")
    a("v_mov_b32 v33, %s" % f32hex(-1e30))
    a("v_mov_b32 v24, v42")
    for w in range(1, 8):
        a("v_cmp_le_u32 vcc, %d, v32" % (2 * w))
        a("s_nop 1")
        a("v_cndmask_b32 v%d, v33, v%d, vcc" % (24 + w, 42 + w))
    a("v_max3_f32 v34, v24, v25, v26")
    a("v_max3_f32 v34, v34, v27, v28")
    a("v_max3_f32 v34, v34, v29, v30")
    a("v_max_f32 v34, v34, v31")
    for w in range(8):
        a("v_sub_f32 v%d, v%d, v34" % (24 + w, 24 + w))
    for w in range(8):
        a("v_exp_f32 v%d, v%d" % (24 + w, 24 + w))
    a("s_nop 0")
    a("v_add_f32 v35, v24, v25")
    for w in range(2, 8):
        a("v_add_f32 v35, v35, v%d" % (24 + w))
    a("v_rcp_f32 v35, v35")
    a("s_nop 0")
    for w in range(8):
        a("v_mul_f32 v%d, v%d, v35" % (44 + 2 * w, 24 + w))
    a("s_waitcnt lgkmcnt(0)")
    for i in range(4):
        a("v_pk_mul_f32 %s, %s, %s op_sel_hi:[0,1]" % (vr(8 + 2 * i, 2), vr(44, 2), vr(128 + 2 * i, 2)))
    for w in range(1, 8):
        for i in range(4):
            a("v_pk_fma_f32 %s, %s, %s, %s op_sel_hi:[0,1,1]" % (vr(8 + 2 * i, 2), vr(44 + 2 * w, 2), vr(128 + 8 * w + 2 * i, 2), vr(8 + 2 * i, 2)))
    for i in range(4):
        a("v_cvt_pk_bf16_f32 v%d, v%d, v%d" % (24 + i, 8 + 2 * i, 9 + 2 * i))
    a("v_lshlrev_b32 v32, 10, v32")
    a("v_lshl_add_u32 v32, v5, 5, v32")
    a("v_lshl_add_u32 v32, v7, 4, v32")
    a("v_add_u32 v32, s30, v32")
    a("buffer_store_dwordx4 %s, v32, s[20:23], 0 offen%s" % (vr(24), STF))
    a.stamp_dump()
    a.label(done)
    a("s_endpgm")
    return name, 240, 240, 131072 + 512


def gen_k24(a, which):
    if which == 2:
        name = "k2_wo_kernel"
        K = 512
    else:
        name = "k4_w2_kernel"
        K = 1792
    kernel_head(a, name)
    done = "L_%s_done" % name
    common_prologue(a, 256, done)
    map32x8(a)
    if which == 2:
        srd(a, 12, P_WS, 2048 * 512 * 2, WS_O)
        srd(a, 16, P_WO, 512 * 512 * 2)
        srd(a, 20, P_X, 2048 * 512 * 2)
        srd(a, 36, P_WS, 2048 * 512 * 2, WS_H)
    else:
        srd(a, 12, P_WS, 2048 * 1792 * 2, WS_HID)
        srd(a, 16, P_W2, 1792 * 512 * 2)
        srd(a, 20, P_WS, 2048 * 512 * 2, WS_H)
        srd(a, 36, P_OUT, 2048 * 512 * 2)
        srd(a, 60, P_B2, 512 * 2)
    P = Pipe(a, K, 128, 4 if which == 2 else 3, 64, K * 2, 128, 1024, 4, 4, [9, 9, 9, 9], 32 * 1024)
    a("s_lshr_b32 s27, s26, 1")
    a("s_and_b32 s28, s26, 1")
    a("s_lshl_b32 s29, s24, 6")
    P.a_pattern(8, 29)
    a("v_lshrrev_b32 v5, 3, v1")
    a("v_bfe_u32 v6, v1, 1, 2")
    a("v_bfe_u32 v7, v1, 4, 1")
    a("s_lshl_b32 s3, s28, 1")
    a("v_or_b32 v7, s3, v7")
    a("v_xor_b32 v6, v6, v7")
    a("v_and_b32 v7, 1, v1")
    a("v_lshlrev_b32 v7, 4, v7")
    a("v_lshl_add_u32 v7, v6, 5, v7")
    a("s_lshl_b32 s3, s26, 3")
    a("v_add_u32 v5, s3, v5")
    a("v_lshl_add_u32 v7, v5, 10, v7")
    a("s_lshl_b32 s3, s25, 7")
    a("v_add_u32 v9, s3, v7")
    P.role_branch(name, 8, 2)
    a("s_lshl_b32 s30, s26, 4")
    a("s_add_u32 s30, s30, s29")
    a("v_lshrrev_b32 v5, 3, v1")
    a("v_add_u32 v5, s30, v5")
    a("v_and_b32 v6, 7, v1")
    a("v_lshlrev_b32 v6, 4, v6")
    a("s_lshl_b32 s30, s25, 7")
    a("v_add_u32 v12, s30, v6")
    a("v_lshl_add_u32 v10, v5, 10, v12")
    a("v_add_u32 v11, 0x2000, v10")
    for p in range(2):
        a("buffer_load_dwordx4 %s, v%d, s[20:23], 0 offen" % (vr(96 + p * 4), 10 + p))
    if which == 4:
        a("buffer_load_dwordx4 %s, v12, s[60:63], 0 offen" % vr(104))
    P.la_pattern(13)
    a("s_mul_i32 s3, s27, %d" % (32 * 256))
    for ks in range(4):
        a("v_add_u32 v%d, s3, v%d" % (13 + ks, 13 + ks))
    a("v_lshrrev_b32 v5, 2, v2")
    a("v_and_b32 v6, 3, v2")
    a("v_lshl_add_u32 v7, v3, 3, v5")
    a("v_lshlrev_b32 v7, 7, v7")
    a("v_lshl_add_u32 v7, v6, 3, v7")
    a("v_add_u32 v7, %d, v7" % P.BOFF)
    a("v_lshrrev_b32 v5, 1, v5")
    a("v_and_b32 v6, 1, v3")
    a("v_lshl_add_u32 v5, v6, 1, v5")
    a("s_lshl_b32 s3, s28, 1")
    a("v_xor_b32 v6, s3, v5")
    a("v_lshl_add_u32 v17, v6, 5, v7")
    a("v_xor_b32 v6, 1, v6")
    a("v_lshl_add_u32 v18, v6, 5, v7")
    addr_regs = [(20 + i, 13 + i) for i in range(6)]
    ACC = 32
    WS_ = [48, 56]
    AS_ = [64, 72]
    for i in range(16):
        a("v_mov_b32 v%d, 0" % (ACC + i))

    def reads(ks, s):
        L = []
        for t in range(2):
            L.append("ds_read_b128 %s, v%d offset:%d" % (vr(AS_[s] + 4 * t), 20 + ks, t * 16 * 256))
        for j in range(2):
            for h in range(2):
                L.append("ds_read_b64_tr_b16 %s, v%d offset:%d" % (vr(WS_[s] + j * 4 + h * 2, 2), 24 + j, ks * 4096 + h * 512))
        return L

    def compute(ks, s):
        mf = []
        for t in range(2):
            for j in range(2):
                mf.append(mfma(ACC + (t * 2 + j) * 4, WS_[s] + j * 4, AS_[s] + 4 * t))
        return mf, [], []

    P.run(name, 8, addr_regs, reads, compute)
    a("s_waitcnt vmcnt(0)")
    a("s_lshl_b32 s3, s27, 5")
    a("v_add_u32 v4, s3, v2")
    a("v_mul_u32_u24 v4, 272, v4")
    a("v_lshl_add_u32 v4, v3, 4, v4")
    a("s_lshl_b32 s3, s28, 7")
    a("v_add_u32 v4, s3, v4")
    a("s_barrier")
    for t in range(2):
        for j in range(2):
            a("ds_write_b128 v4, %s offset:%d" % (vr(ACC + (t * 2 + j) * 4), t * 16 * 272 + j * 64))
    a("v_lshrrev_b32 v5, 3, v1")
    a("s_lshl_b32 s3, s26, 4")
    a("v_add_u32 v5, s3, v5")
    a("v_mul_u32_u24 v5, 272, v5")
    a("v_and_b32 v6, 7, v1")
    a("v_lshl_add_u32 v5, v6, 5, v5")
    a("s_waitcnt lgkmcnt(0)")
    a("s_barrier")
    for p in range(2):
        a("ds_read_b128 %s, v5 offset:%d" % (vr(48 + p * 8), p * 8 * 272))
        a("ds_read_b128 %s, v5 offset:%d" % (vr(52 + p * 8), p * 8 * 272 + 16))
    if which == 4:
        for i in range(4):
            a("v_lshlrev_b32 v%d, 16, v%d" % (72 + 2 * i, 104 + i))
            a("v_and_b32 v%d, 0xffff0000, v%d" % (73 + 2 * i, 104 + i))
    a("s_waitcnt lgkmcnt(0)")
    for p in range(2):
        for i in range(4):
            a("v_lshlrev_b32 v%d, 16, v%d" % (64 + 2 * i, 96 + p * 4 + i))
            a("v_and_b32 v%d, 0xffff0000, v%d" % (65 + 2 * i, 96 + p * 4 + i))
        for i in range(4):
            a("v_pk_add_f32 %s, %s, %s" % (vr(48 + p * 8 + 2 * i, 2), vr(48 + p * 8 + 2 * i, 2), vr(64 + 2 * i, 2)))
        if which == 4:
            for i in range(4):
                a("v_pk_add_f32 %s, %s, %s" % (vr(48 + p * 8 + 2 * i, 2), vr(48 + p * 8 + 2 * i, 2), vr(72 + 2 * i, 2)))
        for i in range(4):
            a("v_cvt_pk_bf16_f32 v%d, v%d, v%d" % (96 + p * 4 + i, 48 + p * 8 + 2 * i, 49 + p * 8 + 2 * i))
        a("buffer_store_dwordx4 %s, v%d, s[36:39], 0 offen%s" % (vr(96 + p * 4), 10 + p, STF))
    a.stamp_dump()
    a.label(done)
    a("s_endpgm")
    return name, 112, 112, P.BUFSZ * P.NBUF


def gen_k3(a):
    name = "k3_w1_kernel"
    kernel_head(a, name)
    done = "L_k3_done"
    common_prologue(a, 256, done)
    map16(a)
    srd(a, 12, P_WS, 2048 * 512 * 2, WS_H)
    srd(a, 16, P_W1, 512 * 1792 * 2)
    srd(a, 20, P_WS, 2048 * 1792 * 2, WS_HID)
    srd(a, 36, P_B1, 1792 * 2)
    P = Pipe(a, 512, 64, 3, 128, 1024, 224, 3584, 4, 4, [9, 10, 11, 12], 0)
    a("s_lshl_b32 s27, s24, 7")
    a("s_mul_i32 s30, s25, 224")
    P.a_pattern(8, 27)
    for t in range(4):
        d = 9 + t
        a("s_lshl_b32 s3, s26, 6")
        a("s_add_u32 s3, s3, %d" % (t * 256))
        a("v_add_u32 v13, s3, v1")
        a("v_mul_u32_u24 v14, 2341, v13")
        a("v_lshrrev_b32 v14, 15, v14")
        a("v_mul_u32_u24 v15, 14, v14")
        a("v_sub_u32 v15, v13, v15")
        a("v_lshrrev_b32 v16, 1, v15")
        a("v_and_b32 v15, 1, v15")
        a("v_bfe_u32 v13, v14, 3, 1")
        a("v_lshlrev_b32 v13, 2, v13")
        a("v_sub_u32 v16, v16, v13")
        a("v_add_u32 v16, 7, v16")
        mod_wrap(a, 16, 7, 13)
        a("v_lshlrev_b32 v16, 5, v16")
        a("v_lshl_add_u32 v16, v15, 4, v16")
        a("v_mul_u32_u24 v14, 3584, v14")
        a("v_add3_u32 v%d, v14, v16, s30" % d)
    def k3_join():
        a("v_lshlrev_b32 v5, 3, v3")
        a("v_add_u32 v5, s30, v5")
        for jp in range(7):
            a("buffer_load_dwordx2 %s, v5, s[36:39], 0 offen offset:%d" % (vr(200 + 2 * jp, 2), jp * 32))
        a("s_lshl_b32 s28, s26, 5")
        a("s_add_u32 s28, s28, s27")
        a("s_lshl_b32 s3, s26, 13")
        a("s_add_u32 s3, s3, %d" % 32768)
        a("v_lshlrev_b32 v9, 4, v1")
        a("v_add_u32 v9, s3, v9")
        a("s_barrier")
        for q in range(7):
            a("ds_read_b128 %s, v9 offset:%d" % (vr(32 + 4 * q), q * 1024))
        a("ds_read_b128 %s, v9 offset:%d" % (vr(216), 7 * 1024))
        a("s_waitcnt vmcnt(0) lgkmcnt(0)")
    P.role_branch("k3", 8, 0, k3_join, "L_k3_gelu")
    a("v_lshlrev_b32 v5, 3, v3")
    a("v_add_u32 v5, s30, v5")
    for jp in range(7):
        a("buffer_load_dwordx2 %s, v5, s[36:39], 0 offen offset:%d" % (vr(200 + 2 * jp, 2), jp * 32))
    a("s_lshl_b32 s28, s26, 5")
    a("s_add_u32 s28, s28, s27")
    P.la_pattern(13)
    a("s_mul_i32 s3, s26, %d" % (32 * 128))
    a("v_add_u32 v13, s3, v13")
    a("v_add_u32 v14, s3, v14")
    a("v_lshrrev_b32 v5, 2, v2")
    a("v_and_b32 v6, 3, v2")
    a("v_lshl_add_u32 v5, v3, 3, v5")
    a("v_mul_u32_u24 v5, 224, v5")
    a("v_lshl_add_u32 v5, v6, 3, v5")
    a("v_add_u32 v5, %d, v5" % P.BOFF)
    a("v_and_b32 v6, 1, v3")
    a("v_lshl_add_u32 v15, v6, 7, v5")
    a("v_mul_u32_u24 v7, 96, v6")
    a("v_sub_u32 v16, v5, v7")
    a("v_lshlrev_b32 v6, 2, v6")
    a("v_add_u32 v7, s26, v6")
    mod_wrap(a, 7, 7, 17)
    a("v_lshl_add_u32 v17, v7, 5, v5")
    a("s_add_u32 s3, s26, 4")
    a("s_min_u32 s3, s3, 6")
    a("v_add_u32 v7, s3, v6")
    mod_wrap(a, 7, 7, 18)
    a("v_lshl_add_u32 v18, v7, 5, v5")
    addr_regs = [(20 + i, 13 + i) for i in range(6)]
    ACC = 32
    WS_ = [96, 132]
    AS_ = [168, 176]
    ST = 184
    SQ = 228
    for i in range(16):
        a("v_mov_b32 v%d, 0" % (SQ + i))
    a("v_mov_b32 v26, 0x3f803f80")
    for i in range(4):
        a("v_mov_b32 v%d, 0x3f803f80" % (188 + i))
    for i in range(64):
        a("v_mov_b32 v%d, 0" % (ACC + i))
    for i in range(4):
        a("v_mov_b32 v%d, 0" % (ST + i))

    def reads(ks, s):
        L = []
        for t in range(2):
            L.append("ds_read_b128 %s, v%d offset:%d" % (vr(AS_[s] + 4 * t), 20 + ks, t * 16 * 128))
        for jp in range(7):
            for h in range(2):
                L.append("ds_read_b64_tr_b16 %s, v%d offset:%d" % (vr(WS_[s] + jp * 4 + h * 2, 2), 22 if jp < 3 else 23, ks * 7168 + h * 896 + jp * 32))
        for e in range(2):
            for h in range(2):
                L.append("ds_read_b64_tr_b16 %s, v%d offset:%d" % (vr(WS_[s] + 28 + e * 4 + h * 2, 2), 24 + e, ks * 7168 + h * 896))
        return L

    def compute(ks, s):
        mf = []
        for jp in range(7):
            for t in range(2):
                mf.append(mfma(ACC + t * 28 + jp * 4, WS_[s] + jp * 4, AS_[s] + 4 * t))
        mf.append(mfma(88, WS_[s] + 28, 188))
        mf.append(mfma(92, WS_[s] + 32, 188))
        for t in range(2):
            mf.append(mfma(SQ + 8 * t, 188, AS_[s] + 4 * t))
            mf.append(mfma(SQ + 8 * t + 4, AS_[s] + 4 * t, AS_[s] + 4 * t))
        return mf, [], []

    P.run("k3", 8, addr_regs, reads, compute)
    a("s_waitcnt vmcnt(0)")
    stats_extract(a, SQ, ST, 2)
    a("v_mov_b32 v4, %s" % f32hex(1.0 / 512))
    a("v_mov_b32 v5, %s" % f32hex(1e-5))
    for t in range(2):
        s_, q_ = ST + 2 * t, ST + 2 * t + 1
        a("v_mul_f32 v%d, v%d, v4" % (s_, s_))
        a("v_mul_f32 v%d, v%d, v4" % (q_, q_))
        a("v_fma_f32 v%d, -v%d, v%d, v%d" % (q_, s_, s_, q_))
        a("v_max_f32 v%d, 0, v%d" % (q_, q_))
        a("v_add_f32 v6, v%d, v5" % q_)
        a("v_rcp_f32 v7, v6")
        a("v_rsq_f32 v6, v6")
        a("s_nop 0")
        a("v_fma_f32 v7, v%d, v7, v5" % q_)
        a("v_rsq_f32 v7, v7")
        a("s_nop 0")
        a("v_mul_f32 v%d, v6, v7" % (218 + 4 * t))
        a("v_mul_f32 v%d, v6, v7" % (219 + 4 * t))
        a("v_mul_f32 v%d, v%d, v%d" % (216 + 4 * t, s_, 218 + 4 * t))
        a("v_mul_f32 v%d, v%d, v%d" % (217 + 4 * t, s_, 218 + 4 * t))
    a.stamp()
    CS = 131072
    XS = 32768
    a("v_lshlrev_b32 v6, 4, v3")
    a("v_add_u32 v6, %d, v6" % CS)
    a("s_lshl_b32 s3, s26, 6")
    a("v_add_u32 v7, s3, v6")
    a("s_add_u32 s3, s26, 4")
    a("s_min_u32 s3, s3, 6")
    a("s_lshl_b32 s3, s3, 6")
    a("v_add_u32 v8, s3, v6")
    a("s_lshl_b32 s3, s26, 13")
    a("s_add_u32 s3, s3, %d" % XS)
    a("v_lshlrev_b32 v9, 4, v1")
    a("v_add_u32 v9, s3, v9")
    for q in range(7):
        a("ds_write_b128 v9, %s offset:%d" % (vr(ACC + 28 + 4 * q), q * 1024))
    a("ds_write_b128 v9, %s offset:%d" % (vr(220), 7 * 1024))
    a("v_cmp_eq_u32 vcc, 0, v2")
    a("s_and_saveexec_b64 s[34:35], vcc")
    a("ds_write_b128 v7, %s" % vr(88))
    a("ds_write_b128 v8, %s" % vr(92))
    a("s_mov_b64 exec, s[34:35]")
    a("s_waitcnt lgkmcnt(0)")
    a("s_barrier")
    a.label("L_k3_gelu")
    a("v_lshlrev_b32 v6, 4, v3")
    a("v_add_u32 v6, %d, v6" % CS)
    for jp in range(7):
        a("ds_read_b128 %s, v6 offset:%d" % (vr(96 + jp * 4), jp * 64))
    a("s_lshl_b32 s31, s26, 1")
    a("s_add_u32 s31, s31, s51")
    a("s_mul_i32 s31, s31, 3840")
    a("s_lshl_b32 s3, s51, 4")
    a("s_add_u32 s28, s28, s3")
    a("s_mov_b32 s32, 3584")
    a("v_mul_u32_u24 v30, 240, v2")
    a("v_lshl_add_u32 v30, v3, 3, v30")
    a("v_add_u32 v30, s31, v30")
    C0 = 0.7978845608028654
    c1 = f32hex(-2.0 * LOG2E * C0)
    c2 = f32hex(-2.0 * LOG2E * C0 * 0.044715)
    a("v_mov_b32 v224, %s" % c1)
    a("v_mov_b32 v225, %s" % c1)
    a("v_mov_b32 v226, %s" % c2)
    a("v_mov_b32 v227, %s" % c2)
    for jp in range(7):
        a("v_lshlrev_b32 v%d, 16, v%d" % (124 + 4 * jp, 200 + 2 * jp))
        a("v_and_b32 v%d, 0xffff0000, v%d" % (125 + 4 * jp, 200 + 2 * jp))
        a("v_lshlrev_b32 v%d, 16, v%d" % (126 + 4 * jp, 201 + 2 * jp))
        a("v_and_b32 v%d, 0xffff0000, v%d" % (127 + 4 * jp, 201 + 2 * jp))
    a("s_waitcnt lgkmcnt(0)")
    a.stamp()
    TB = 152
    prs = [(jp, p) for jp in range(7) for p in range(2)]

    def A_(jp, p):
        return vr(ACC + jp * 4 + 2 * p, 2)

    def T_(jp, p):
        return vr(TB + jp * 4 + 2 * p, 2)

    for (jp, p) in prs:
        a("v_pk_fma_f32 %s, %s, %s, %s neg_lo:[1,0,0] neg_hi:[1,0,0]" % (T_(jp, p), vr(216, 2), vr(96 + jp * 4 + 2 * p, 2), vr(124 + jp * 4 + 2 * p, 2)))
    for (jp, p) in prs:
        a("v_pk_fma_f32 %s, %s, %s, %s" % (A_(jp, p), A_(jp, p), vr(218, 2), T_(jp, p)))
    for (jp, p) in prs:
        a("v_pk_mul_f32 %s, %s, %s" % (T_(jp, p), A_(jp, p), A_(jp, p)))
    for (jp, p) in prs:
        a("v_pk_fma_f32 %s, %s, %s, %s" % (T_(jp, p), T_(jp, p), vr(226, 2), vr(224, 2)))
    for (jp, p) in prs:
        a("v_pk_mul_f32 %s, %s, %s" % (T_(jp, p), T_(jp, p), A_(jp, p)))
    for i in range(28):
        a("v_exp_f32 v%d, v%d" % (TB + i, TB + i))
    for (jp, p) in prs:
        a("v_pk_add_f32 %s, %s, 1.0 op_sel_hi:[1,0]" % (T_(jp, p), T_(jp, p)))
    for i in range(28):
        a("v_rcp_f32 v%d, v%d" % (TB + i, TB + i))
    for (jp, p) in prs:
        a("v_pk_mul_f32 %s, %s, %s" % (A_(jp, p), A_(jp, p), T_(jp, p)))
    for jp in range(7):
        accb = ACC + jp * 4
        T = TB + jp * 4
        a("v_cvt_pk_bf16_f32 v%d, v%d, v%d" % (T, accb, accb + 1))
        a("v_cvt_pk_bf16_f32 v%d, v%d, v%d" % (T + 1, accb + 2, accb + 3))
    for jp in range(7):
        a("ds_write_b64 v30, %s offset:%d" % (vr(TB + jp * 4, 2), jp * 32))
    a.stamp()
    for p in range(4):
        a("v_add_u32 v4, %d, v1" % (p * 64))
        a("v_mul_u32_u24 v5, 2341, v4")
        a("v_lshrrev_b32 v5, 15, v5")
        a("v_mul_u32_u24 v6, 14, v5")
        a("v_sub_u32 v6, v4, v6")
        a("v_lshlrev_b32 v6, 4, v6")
        a("v_mul_u32_u24 v7, 240, v5")
        a("v_add3_u32 v%d, v7, v6, s31" % (32 + p))
        a("v_add_u32 v5, s28, v5")
        a("v_mul_lo_u32 v5, v5, s32")
        a("v_add3_u32 v%d, v5, v6, s30" % (40 + p))
    a("s_waitcnt lgkmcnt(0)")
    for p in range(4):
        a("ds_read_b128 %s, v%d" % (vr(96 + 4 * p), 32 + p))
    for p in range(3):
        a("s_waitcnt lgkmcnt(%d)" % (3 - p))
        a("buffer_store_dwordx4 %s, v%d, s[20:23], 0 offen%s" % (vr(96 + 4 * p), 40 + p, STF))
    a("v_cmp_gt_u32 vcc, 32, v1")
    a("s_and_saveexec_b64 s[34:35], vcc")
    a("s_waitcnt lgkmcnt(0)")
    a("buffer_store_dwordx4 %s, v43, s[20:23], 0 offen%s" % (vr(108), STF))
    a("s_mov_b64 exec, s[34:35]")
    a.stamp()
    a.stamp_dump()
    a.label(done)
    a("s_endpgm")
    return name, 244, 244, 131072 + 512


def main():
    global STAMP, OUT, EXP, STF
    if len(sys.argv) > 1 and sys.argv[1] == "stamp":
        STAMP = True
        OUT = "stamp.s"
        if len(sys.argv) > 2:
            EXP = sys.argv[2]
            OUT = "stamp_%s.s" % EXP
            if "sc1" in EXP:
                STF = " sc1"
            if "nt" in EXP:
                STF = " nt"
            if "both" in EXP:
                STF = " sc0 sc1"
    a = Asm()
    ks = [gen_k1(a), gen_k24(a, 2), gen_k3(a), gen_k24(a, 4)]
    head = open("cdna_kernels/%s.s.ref" % NAME).read().split("; Override launch")[0]
    out = head
    for (name, nv, acc, lds) in ks:
        out += "; @launch kernel=%s grid=(256,1,1) block=(512,1,1) lds=%d\n" % (name, lds)
    out += '.amdgcn_target "amdgcn-amd-amdhsa--gfx950"\n.text\n'
    out += a.text()
    out += "L_code_end:\n"
    out += '.section .rodata,"a"\n'
    for (name, nv, acc, lds) in ks:
        out += ".p2align 6\n" + kernel_desc(name, nv, acc)
    open(OUT, "w").write(out)
    print("wrote", OUT, len(out))


if __name__ == "__main__":
    assert all((sl * 2731) >> 15 == sl // 12 for sl in range(768))
    assert all((sl * 2341) >> 15 == sl // 14 for sl in range(1024))
    main()
```

```python
import sys, struct

NAME = "sequential_preLN__sliding_local_dilated__mixer_channel_mlp__prompt"
OUT = "cdna_kernels/%s.s" % NAME

WS_O = 0
WS_H = 2 * 1024 * 1024
WS_HID = 4 * 1024 * 1024
LOG2E = 1.4426950408889634
STAMP = False
EXP = ""
STF = ""
STREG = list(range(86, 100)) + list(range(52, 60))


def f32hex(x):
    return "0x%08x" % struct.unpack("<I", struct.pack("<f", x))[0]


class Asm:
    def __init__(self):
        self.lines = []
        self.nst = 0
        self.kidx = 0

    def __call__(self, s):
        self.lines.append("    " + s)

    def label(self, s):
        self.lines.append(s + ":")

    def raw(self, s):
        self.lines.append(s)

    def text(self):
        return "\n".join(self.lines) + "\n"

    def stamp(self):
        if not STAMP:
            return
        if self.nst == 0:
            self("s_memrealtime s[100:101]")
            self("s_waitcnt lgkmcnt(0)")
            self("s_mov_b32 s%d, s100" % STREG[-1])
        self("s_memtime s[100:101]")
        self("s_waitcnt lgkmcnt(0)")
        self("s_mov_b32 s%d, s100" % STREG[self.nst])
        self.nst += 1

    def stamp_dump(self):
        if not STAMP:
            return
        self("s_waitcnt vmcnt(0)")
        self.stamp()
        n = self.nst
        self("s_or_b32 s3, s26, s51")
        self("s_cmp_lg_u32 s3, 0")
        self("s_cbranch_scc1 L_st_skip%d" % self.kidx)
        self("s_add_u32 s60, s84, %d" % (12 * 1024 * 1024 + self.kidx * 65536))
        self("s_addc_u32 s61, s85, 0")
        self("s_and_b32 s61, s61, 0xffff")
        self("s_mov_b32 s62, 65536")
        self("s_mov_b32 s63, 0x20000")
        self("s_lshl_b32 s3, s2, 7")
        self("v_mov_b32 v1, s3")
        for i in range(n):
            self("v_mov_b32 v2, s%d" % STREG[i])
            self("buffer_store_dword v2, v1, s[60:63], 0 offen offset:%d" % (4 * i))
        self("s_memrealtime s[100:101]")
        self("s_waitcnt lgkmcnt(0)")
        self("v_mov_b32 v2, s%d" % STREG[-1])
        self("buffer_store_dword v2, v1, s[60:63], 0 offen offset:120")
        self("v_mov_b32 v2, s100")
        self("buffer_store_dword v2, v1, s[60:63], 0 offen offset:124")
        self.label("L_st_skip%d" % self.kidx)
        self.nst = 0
        self.kidx += 1


def srd(a, d, ptr, nbytes, off=0):
    if off:
        a("s_add_u32 s%d, s%d, %d" % (d, ptr, off))
        a("s_addc_u32 s%d, s%d, 0" % (d + 1, ptr + 1))
        a("s_and_b32 s%d, s%d, 0xffff" % (d + 1, d + 1))
    else:
        a("s_mov_b32 s%d, s%d" % (d, ptr))
        a("s_and_b32 s%d, s%d, 0xffff" % (d + 1, ptr + 1))
    a("s_mov_b32 s%d, %d" % (d + 2, nbytes))
    a("s_mov_b32 s%d, 0x00020000" % (d + 3))


def kernel_head(a, name):
    a.raw(".globl %s" % name)
    a.raw(".p2align 8")
    a.raw(".type %s,@function" % name)
    a.label(name)


def kernel_desc(name, nvgpr, accum, nsgpr=102):
    return """.amdhsa_kernel %s
  .amdhsa_next_free_vgpr %d
  .amdhsa_next_free_sgpr %d
  .amdhsa_accum_offset %d
  .amdhsa_group_segment_fixed_size 0
  .amdhsa_kernarg_size 88
  .amdhsa_user_sgpr_count 2
  .amdhsa_user_sgpr_kernarg_segment_ptr 1
  .amdhsa_system_sgpr_workgroup_id_x 1
.end_amdhsa_kernel
""" % (name, nvgpr, nsgpr, accum)


def vr(b, n=4):
    return "v[%d:%d]" % (b, b + n - 1)


P_X, P_WQKV, P_WO, P_W1, P_B1, P_W2, P_B2, P_OUT, P_WS = 64, 66, 68, 72, 74, 76, 78, 80, 84


def common_prologue(a, nwg, done):
    if "half" in EXP:
        nwg = 128
    if "quarter" in EXP:
        nwg = 64
    a("s_cmp_ge_u32 s2, %d" % nwg)
    a("s_cbranch_scc1 %s" % done)
    a("s_load_dwordx16 s[64:79], s[0:1], 0")
    a("s_load_dwordx4 s[80:83], s[0:1], 64")
    a("s_load_dwordx2 s[84:85], s[0:1], 80")
    a("v_and_b32 v1, 63, v0")
    a("v_lshrrev_b32 v4, 6, v0")
    a("v_and_b32 v2, 15, v0")
    a("v_bfe_u32 v3, v0, 4, 2")
    a("v_readfirstlane_b32 s26, v4")
    a("s_waitcnt lgkmcnt(0)")
    a("s_lshr_b32 s51, s26, 2")
    a("s_and_b32 s26, s26, 3")
    a.stamp()


def map16(a):
    a("s_bfe_u32 s24, s2, 0x20001")
    a("s_lshl_b32 s24, s24, 2")
    a("s_lshr_b32 s25, s2, 6")
    a("s_add_u32 s24, s24, s25")
    a("s_and_b32 s25, s2, 1")
    a("s_lshl_b32 s25, s25, 3")
    a("s_bfe_u32 s3, s2, 0x30003")
    a("s_add_u32 s25, s25, s3")


def map32x8(a):
    a("s_and_b32 s24, s2, 7")
    a("s_lshl_b32 s24, s24, 2")
    a("s_lshr_b32 s25, s2, 6")
    a("s_add_u32 s24, s24, s25")
    a("s_bfe_u32 s25, s2, 0x30003")


def merge3(mf, rd, va, tail):
    out = []
    if "novalu" in EXP:
        va = []
    if "nord" in EXP:
        rd = []
    if "nomf" in EXP:
        mf = ["s_nop 0"]
        tail = []
    if "trhalf" in EXP:
        rd = [r for i, r in enumerate(rd) if "tr" not in r or i % 2 == 0]
    if "nob128" in EXP:
        rd = [r for r in rd if "b128" not in r]
    n = len(mf)
    ri = vi = 0
    for i, m in enumerate(mf):
        out.append(m)
        rt = (len(rd) * (i + 1) + n - 1) // n
        vt = (len(va) * (i + 1) + n - 1) // n
        while ri < rt:
            out.append(rd[ri]); ri += 1
        while vi < vt:
            out.append(va[vi]); vi += 1
    out += rd[ri:] + va[vi:] + tail
    return out


def interleave(mf, va, lead=0):
    out = []
    n = len(mf)
    per = -(-len(va) // max(n, 1))
    vi = 0
    for i, m in enumerate(mf):
        out.append(m)
        for _ in range(per):
            if vi < len(va):
                out.append(va[vi])
                vi += 1
    out += va[vi:]
    return out


class Pipe:
    def __init__(self, a, K, KC, NBUF, RA, A_RS, BROW, B_RS, nA, nB, BPAT, bt_adv):
        self.a = a
        self.K, self.KC, self.NBUF = K, KC, NBUF
        self.NC = K // KC
        self.KSC = KC // 32
        self.AROW = KC * 2
        self.RA, self.A_RS, self.BROW, self.B_RS = RA, A_RS, BROW, B_RS
        self.nA, self.nB = nA, nB
        self.BOFF = nA * 4 * 1024
        self.BUFSZ = (nA + nB) * 4 * 1024
        self.BPAT = BPAT
        self.bt_adv = bt_adv
        self.rows_per_instr = 1024 // self.AROW
        self.ND = nA + nB

    def a_pattern(self, dst, rowbase_s):
        a = self.a
        rpi = self.rows_per_instr
        if rpi == 8:
            a("v_lshrrev_b32 v5, 3, v1")
            a("v_and_b32 v6, 7, v1")
            a("s_lshl_b32 s3, s26, 2")
            a("v_lshrrev_b32 v7, 1, v5")
            a("v_add_u32 v7, s3, v7")
            a("v_and_b32 v7, 7, v7")
        else:
            a("v_lshrrev_b32 v5, 4, v1")
            a("v_and_b32 v6, 15, v1")
            a("s_lshl_b32 s3, s26, 2")
            a("v_add_u32 v7, s3, v5")
        a("v_xor_b32 v6, v6, v7")
        a("s_mul_i32 s3, s26, %d" % rpi)
        a("s_add_u32 s3, s3, s%d" % rowbase_s)
        a("v_add_u32 v5, s3, v5")
        a("s_mov_b32 s3, %d" % self.A_RS)
        a("v_mul_lo_u32 v5, v5, s3")
        a("v_lshl_add_u32 v%d, v6, 4, v5" % dst)

    def la_pattern(self, dst):
        a = self.a
        if self.rows_per_instr == 8:
            a("v_lshrrev_b32 v5, 1, v2")
        else:
            a("v_mov_b32 v5, v2")
        a("v_mul_u32_u24 v6, %d, v2" % self.AROW)
        for ks in range(self.KSC):
            a("v_add_u32 v7, %d, v3" % (4 * ks))
            a("v_xor_b32 v7, v7, v5")
            a("v_lshl_add_u32 v%d, v7, 4, v6" % (dst + ks))

    def role_branch(self, name, APAT, *largs):
        self.name, self.APAT = name, APAT
        self.init_state()
        self.a("s_cmp_eq_u32 s51, 0")
        self.a("s_cbranch_scc1 L_%s_compute" % name)
        self.loader(*largs)
        self.a.label("L_%s_compute" % name)

    def init_state(self):
        a = self.a
        a("s_mov_b32 s40, 0")
        a("s_mov_b32 s41, 0")
        if "norot" in EXP or self.RA != 160:
            a("s_mov_b32 s42, 0")
            a("s_mov_b32 s43, 0")
        else:
            a("s_add_u32 s42, s24, s25")
            if self.NC & (self.NC - 1) == 0:
                a("s_and_b32 s42, s42, %d" % (self.NC - 1))
            else:
                a("s_mul_i32 s43, s42, %d" % ((65536 + self.NC - 1) // self.NC))
                a("s_lshr_b32 s43, s43, 16")
                a("s_mul_i32 s43, s43, %d" % self.NC)
                a("s_sub_u32 s42, s42, s43")
            a("s_mul_i32 s43, s42, %d" % (self.KC * self.B_RS))
            a("s_mul_i32 s42, s42, %d" % (self.KC * 2))
        a("s_mov_b32 s44, 0")
        a("s_lshl_b32 s46, s26, 10")

    def dma(self, pat, srd_, so):
        if "contig" in EXP:
            self.cnt = getattr(self, "cnt", 0) + 1
            self.a("s_lshl_b32 s49, s40, 15")
            self.a("s_add_u32 s49, s49, %d" % ((self.cnt % 32) * 4096 % 262144))
            self.a("s_lshl_b32 s50, s2, 11")
            self.a("s_add_u32 s49, s49, s50")
            self.a("v_lshlrev_b32 v5, 4, v0")
            self.a("buffer_load_dwordx4 v5, s[%d:%d], s49 offen lds" % (srd_, srd_ + 3))
        elif "vgpr" in EXP:
            self.rot = (getattr(self, "rot", 0) + 1) % 8
            self.a("buffer_load_dwordx4 %s, v%d, s[%d:%d], s%d offen" % (vr(64 + 4 * self.rot), pat, srd_, srd_ + 3, so))
        else:
            self.a("buffer_load_dwordx4 v%d, s[%d:%d], s%d offen lds" % (pat, srd_, srd_ + 3, so))

    def issue_chunk(self, APAT):
        a = self.a
        a("s_add_u32 s47, s41, s46")
        for t in range(self.nA):
            a("s_add_u32 m0, s47, %d" % (t * 4096))
            if isinstance(APAT, list):
                a("s_nop 0")
                self.dma(APAT[t], 12, 42)
            else:
                a("s_add_u32 s48, s42, %d" % (t * 4 * self.rows_per_instr * self.A_RS))
                self.dma(APAT, 12, 48)
        for t in range(self.nB):
            a("s_add_u32 m0, s47, %d" % (self.BOFF + t * 4096))
            a("s_add_u32 s48, s43, %d" % (t * self.bt_adv))
            self.dma(self.BPAT[t], 16, 48)
        a("s_add_u32 s41, s41, %d" % self.BUFSZ)
        a("s_cmp_ge_u32 s41, %d" % (self.BUFSZ * self.NBUF))
        a("s_cselect_b32 s41, 0, s41")
        a("s_add_u32 s42, s42, %d" % (self.KC * 2))
        a("s_add_u32 s43, s43, %d" % (self.KC * self.B_RS))
        a("s_cmp_ge_u32 s42, %d" % (self.K * 2))
        a("s_cselect_b32 s42, 0, s42")
        a("s_cselect_b32 s43, 0, s43")

    def run(self, name, APAT, addr_regs, reads, compute):
        a = self.a
        NB, NC, KSC, ND = self.NBUF, self.NC, self.KSC, self.ND
        for (cur, base) in addr_regs:
            a("v_mov_b32 v%d, v%d" % (cur, base))
        a.stamp()
        a("s_barrier")
        a.stamp()
        for l in reads(0, 0):
            a(l)
        a("s_waitcnt lgkmcnt(0)")
        a.label("L_%s_loop" % name)
        for ks in range(KSC - 1):
            mf, va, tail = compute(ks, ks & 1)
            for l in merge3(mf, reads(ks + 1, (ks + 1) & 1), va, tail):
                a(l)
            a("s_waitcnt lgkmcnt(0)")
        a("s_barrier")
        a("s_add_u32 s44, s44, %d" % self.BUFSZ)
        a("s_cmp_ge_u32 s44, %d" % (self.BUFSZ * NB))
        a("s_cselect_b32 s44, 0, s44")
        for (cur, base) in addr_regs:
            a("v_add_u32 v%d, s44, v%d" % (cur, base))
        mf, va, tail = compute(KSC - 1, (KSC - 1) & 1)
        for l in merge3(mf, reads(0, 0), va, tail):
            a(l)
        a("s_waitcnt lgkmcnt(0)")
        a("s_add_u32 s40, s40, 1")
        a("s_cmp_lt_u32 s40, %d" % NC)
        a("s_cbranch_scc1 L_%s_loop" % name)
        a("s_nop 7")
        a("s_nop 7")
        a.stamp()

    def loader(self, n_epi_barriers, extra=None, join=None):
        a = self.a
        name, APAT = self.name, self.APAT
        NB, NC, KSC, ND = self.NBUF, self.NC, self.KSC, self.ND
        a.label("L_%s_loader" % name)
        for c in range(2):
            self.issue_chunk(APAT)
        a("s_waitcnt vmcnt(%d)" % ND)
        a("s_barrier")
        for c in range(2, NB):
            self.issue_chunk(APAT)
        a.label("L_%s_lloop" % name)
        a("s_cmp_lt_u32 s40, %d" % (NC - NB + 1))
        a("s_cbranch_scc1 L_%s_wfull" % name)
        for r in range(NB - 3, -1, -1):
            if NC - 2 - r >= 0:
                a("s_cmp_eq_u32 s40, %d" % (NC - 2 - r))
                a("s_cbranch_scc0 L_%s_w%d" % (name, r))
                a("s_waitcnt vmcnt(%d)" % (ND * r))
                a("s_branch L_%s_wdone" % name)
                a.label("L_%s_w%d" % (name, r))
        a("s_waitcnt vmcnt(0)")
        a("s_branch L_%s_wdone" % name)
        a.label("L_%s_wfull" % name)
        a("s_waitcnt vmcnt(%d)" % (ND * (NB - 2)))
        a.label("L_%s_wdone" % name)
        a("s_barrier")
        a("s_cmp_lt_u32 s40, %d" % (NC - NB))
        a("s_cbranch_scc0 L_%s_noissue" % name)
        self.issue_chunk(APAT)
        a.label("L_%s_noissue" % name)
        a("s_add_u32 s40, s40, 1")
        a("s_cmp_lt_u32 s40, %d" % NC)
        a("s_cbranch_scc1 L_%s_lloop" % name)
        if extra:
            extra()
        for i in range(n_epi_barriers):
            a("s_barrier")
        if join:
            a("s_waitcnt vmcnt(0)")
            a("s_branch %s" % join)
        else:
            a("s_endpgm")


def mfma(d, A, B):
    return "v_mfma_f32_16x16x32_bf16 %s, %s, %s, %s" % (vr(d), vr(A), vr(B), vr(d))


def reduce_groups(a, regs, tmp, addr16, addr32):
    for addr in (addr16, addr32):
        for i, r in enumerate(regs):
            a("ds_bpermute_b32 v%d, v%d, v%d" % (tmp + i, addr, r))
        a("s_waitcnt lgkmcnt(0)")
        for i, r in enumerate(regs):
            a("v_add_f32 v%d, v%d, v%d" % (r, r, tmp + i))


def stats_extract(a, SQ, ST, nt):
    a("v_and_b32 v4, 3, v2")
    a("v_cmp_eq_u32 s[36:37], 1, v4")
    a("v_cmp_eq_u32 s[38:39], 2, v4")
    a("v_cmp_eq_u32 vcc, 3, v4")
    a("v_lshrrev_b32 v4, 2, v2")
    a("v_lshl_add_u32 v4, v4, 4, v2")
    a("v_lshlrev_b32 v4, 2, v4")
    for t in range(nt):
        g = SQ + 8 * t + 4
        a("v_cndmask_b32 v%d, v%d, v%d, s[36:37]" % (g, g, g + 1))
        a("v_cndmask_b32 v%d, v%d, v%d, s[38:39]" % (g, g, g + 2))
        a("v_cndmask_b32 v%d, v%d, v%d, vcc" % (g, g, g + 3))
        a("ds_bpermute_b32 v%d, v4, v%d" % (ST + 2 * t + 1, g))
        a("v_mov_b32 v%d, v%d" % (ST + 2 * t, SQ + 8 * t))
    a("s_waitcnt lgkmcnt(0)")


def mod_wrap(a, v, m, tmp):
    a("v_subrev_u32 v%d, %d, v%d" % (tmp, m, v))
    a("v_min_u32 v%d, v%d, v%d" % (v, v, tmp))


def gen_k1(a):
    name = "k1_qkv_attn_kernel"
    kernel_head(a, name)
    done = "L_k1_done"
    common_prologue(a, 256, done)
    map16(a)
    srd(a, 12, P_X, 2048 * 512 * 2)
    srd(a, 16, P_WQKV, 512 * 1536 * 2)
    srd(a, 20, P_WS, 2048 * 512 * 2, WS_O)
    P = Pipe(a, 512, 64, 3, 160, 1024, 192, 3072, 5, 3, [9, 10, 11], 0)
    a("s_lshl_b32 s27, s24, 7")
    a("s_sub_u32 s28, s27, 16")
    a("s_lshl_b32 s30, s25, 6")
    P.a_pattern(8, 28)
    for t in range(3):
        d = 9 + t
        a("s_lshl_b32 s3, s26, 6")
        a("s_add_u32 s3, s3, %d" % (t * 256))
        a("v_add_u32 v12, s3, v1")
        a("v_mul_u32_u24 v13, 2731, v12")
        a("v_lshrrev_b32 v13, 15, v13")
        a("v_mul_u32_u24 v14, 12, v13")
        a("v_sub_u32 v14, v12, v14")
        a("v_lshrrev_b32 v15, 1, v14")
        a("v_and_b32 v14, 1, v14")
        a("v_bfe_u32 v16, v13, 3, 1")
        a("v_sub_u32 v15, v15, v16")
        a("v_add_u32 v15, 6, v15")
        mod_wrap(a, 15, 6, 16)
        a("v_lshrrev_b32 v16, 1, v15")
        a("v_and_b32 v15, 1, v15")
        a("v_lshlrev_b32 v15, 5, v15")
        a("v_lshl_add_u32 v15, v14, 4, v15")
        a("v_lshl_add_u32 v15, v16, 10, v15")
        a("v_mul_u32_u24 v13, 3072, v13")
        a("v_add3_u32 v%d, v13, v15, s30" % d)
    for t in range(1, 5):
        a("v_add_u32 v%d, %d, v8" % (203 + t, t * 32 * 1024))
    def prefetch():
        srd(a, 52, P_WO, 512 * 512 * 2)
        a("v_lshlrev_b32 v4, 4, v1")
        a("s_lshl_b32 s3, s2, 11")
        a("s_lshl_b32 s56, s26, 9")
        a("s_add_u32 s3, s3, s56")
        a("v_and_b32 v5, 0x1ff, v4")
        a("buffer_load_dwordx4 %s, v5, s[52:55], s3 offen" % vr(64))
        srd(a, 52, P_W1, 512 * 1792 * 2)
        srd(a, 56, P_W2, 512 * 1792 * 2)
        a("s_mul_i32 s3, s2, 7168")
        a("s_mul_i32 s60, s26, 1792")
        a("s_add_u32 s3, s3, s60")
        a("buffer_load_dwordx4 %s, v4, s[52:55], s3 offen" % vr(68))
        a("buffer_load_dwordx4 %s, v4, s[52:55], s3 offen offset:768" % vr(72))
        a("buffer_load_dwordx4 %s, v4, s[56:59], s3 offen" % vr(76))
        a("buffer_load_dwordx4 %s, v4, s[56:59], s3 offen offset:768" % vr(80))
        if "notlb" not in EXP:
            srd(a, 52, P_WS, 11 * 1024 * 1024)
            srd(a, 56, P_OUT, 2048 * 512 * 2)
            a("s_lshr_b32 s3, s2, 3")
            a("s_lshl_b32 s3, s3, 2")
            a("s_add_u32 s3, s3, s26")
            a("s_lshl_b32 s3, s3, 6")
            a("v_add_u32 v5, s3, v1")
            a("v_lshlrev_b32 v5, 12, v5")
            a("buffer_load_dword v88, v5, s[52:55], 0 offen")
            a("buffer_load_dword v89, v5, s[56:59], 0 offen")
        if "nocode" not in EXP:
            a("s_getpc_b64 s[56:57]")
            a.label("L_pc_here")
            a("s_add_u32 s56, s56, k2_wo_kernel - L_pc_here")
            a("s_addc_u32 s57, s57, 0")
            a("s_lshr_b32 s3, s2, 3")
            a("s_lshl_b32 s3, s3, 2")
            a("s_add_u32 s3, s3, s26")
            a("s_lshl_b32 s3, s3, 10")
            a("v_add_u32 v5, s3, v4")
            a("v_min_u32 v5, L_code_end - k2_wo_kernel - 16, v5")
            a("global_load_dwordx4 %s, v5, s[56:57]" % vr(84))
    P.role_branch("k1", [8, 204, 205, 206, 207], 2, prefetch if "nopf" not in EXP else None, "L_k1_attn")
    P.la_pattern(12)
    a("v_lshrrev_b32 v5, 2, v2")
    a("v_and_b32 v6, 3, v2")
    a("v_lshl_add_u32 v5, v3, 3, v5")
    a("v_mul_u32_u24 v5, 192, v5")
    a("v_lshl_add_u32 v5, v6, 3, v5")
    a("v_add_u32 v5, %d, v5" % P.BOFF)
    a("v_and_b32 v6, 1, v3")
    a("v_lshl_add_u32 v14, v6, 5, v5")
    a("v_mul_u32_u24 v7, 160, v6")
    a("v_sub_u32 v15, 160, v7")
    a("v_add_u32 v15, v15, v5")
    a("s_add_u32 s3, s26, 2")
    a("v_add_u32 v7, s3, v6")
    mod_wrap(a, 7, 6, 16)
    a("v_lshl_add_u32 v16, v7, 5, v5")
    a("s_and_b32 s3, s26, 1")
    a("v_add_u32 v7, s3, v6")
    a("v_lshl_add_u32 v17, v7, 5, v5")
    addr_regs = [(18, 12), (19, 13), (20, 14), (21, 15), (22, 16), (23, 17)]
    ACC = 32
    WS_ = [88, 120]
    AS_ = [152, 164]
    ST = 176
    SQ = 208
    ONES = 232
    for i in range(24):
        a("v_mov_b32 v%d, 0" % (SQ + i))
    for i in range(4):
        a("v_mov_b32 v%d, 0x3f803f80" % (ONES + i))
    a("v_mov_b32 v24, 0x3f803f80")
    a("v_cmp_eq_u32 s[34:35], 0, v2")
    for i in range(56):
        a("v_mov_b32 v%d, 0" % (ACC + i))
    for i in range(6):
        a("v_mov_b32 v%d, 0" % (ST + i))
    arow = [16, 32, 0]
    a("s_mul_i32 s3, s26, %d" % (32 * 128))
    a("v_add_u32 v25, s3, v12")
    a("v_add_u32 v26, s3, v13")
    addr_regs += [(28, 25), (29, 26)]

    def reads(ks, s):
        L = []
        for t in range(2):
            L.append("ds_read_b128 %s, v%d offset:%d" % (vr(AS_[s] + 4 * t), 28 + ks, arow[t] * 128))
        L.append("ds_read_b128 %s, v%d" % (vr(AS_[s] + 8), 18 + ks))
        for jp in range(6):
            for h in range(2):
                off = ks * 6144 + h * 768 + (jp * 32 if jp < 5 else 0)
                L.append("ds_read_b64_tr_b16 %s, v%d offset:%d" % (vr(WS_[s] + jp * 4 + h * 2, 2), 20 if jp < 5 else 21, off))
        for e in range(2):
            for h in range(2):
                L.append("ds_read_b64_tr_b16 %s, v%d offset:%d" % (vr(WS_[s] + 24 + e * 4 + h * 2, 2), 22 + e, ks * 6144 + h * 768))
        return L

    def compute(ks, s):
        mf = []
        for jp in range(6):
            for t in range(2):
                mf.append(mfma(ACC + t * 24 + jp * 4, WS_[s] + jp * 4, AS_[s] + 4 * t))
        pre = []
        for t in (2, 0, 1):
            pre.append(mfma(SQ + 8 * t, ONES, AS_[s] + 4 * t))
            pre.append(mfma(SQ + 8 * t + 4, AS_[s] + 4 * t, AS_[s] + 4 * t))
        mf = pre + mf
        va = []
        tail = []
        for i in range(4):
            r = AS_[s] + 8 + i
            tail.append("v_cndmask_b32 v%d, v%d, v24, s[34:35]" % (r, r))
        return mf, va, tail + ["s_nop 1", mfma(80, WS_[s] + 24, AS_[s] + 8), mfma(84, WS_[s] + 28, AS_[s] + 8)]

    P.run("k1", [8, 204, 205, 206, 207], addr_regs, reads, compute)
    stats_extract(a, SQ, ST, 3)
    a("v_mov_b32 v4, %s" % f32hex(1.0 / 512))
    a("v_mov_b32 v5, %s" % f32hex(1e-5))
    for t in range(3):
        s_, q_ = ST + 2 * t, ST + 2 * t + 1
        a("v_mul_f32 v%d, v%d, v4" % (s_, s_))
        a("v_mul_f32 v%d, v%d, v4" % (q_, q_))
        a("v_fma_f32 v%d, -v%d, v%d, v%d" % (q_, s_, s_, q_))
        a("v_max_f32 v%d, 0, v%d" % (q_, q_))
        a("v_add_f32 v%d, v%d, v5" % (q_, q_))
        a("v_rsq_f32 v%d, v%d" % (q_, q_))
        a("s_nop 0")
        a("v_mul_f32 v%d, v%d, v%d" % (192 + 4 * t, s_, q_))
        a("v_mul_f32 v%d, v%d, v%d" % (193 + 4 * t, s_, q_))
        a("v_mov_b32 v%d, v%d" % (194 + 4 * t, q_))
        a("v_mov_b32 v%d, v%d" % (195 + 4 * t, q_))
    CS = 131072
    a("v_lshlrev_b32 v6, 4, v3")
    a("v_add_u32 v7, %d, v6" % CS)
    a("s_add_u32 s36, s26, 2")
    a("s_lshl_b32 s36, s36, 6")
    a("v_add_u32 v8, s36, v7")
    a("s_and_b32 s37, s26, 1")
    a("s_lshl_b32 s37, s37, 6")
    a("v_add_u32 v9, s37, v7")
    a("s_and_saveexec_b64 s[36:37], s[34:35]")
    a("ds_write_b128 v8, %s" % vr(80))
    a("ds_write_b128 v9, %s" % vr(84))
    a("s_mov_b64 exec, s[36:37]")
    a("s_waitcnt lgkmcnt(0)")
    a("s_barrier")
    for jp in range(6):
        a("ds_read_b128 %s, v7 offset:%d" % (vr(88 + jp * 4), jp * 64))
    a("ds_read_b128 %s, v8" % vr(112))
    QB, KB, VB = 0, 128 * 144, 128 * 144 + 144 * 144
    a("s_lshl_b32 s36, s26, 5")
    a("v_add_u32 v10, s36, v2")
    a("v_mul_u32_u24 v10, 144, v10")
    a("v_add_u32 v10, v10, v6")
    a("v_mul_u32_u24 v11, 144, v2")
    a("v_add_u32 v11, v11, v6")
    a("s_cmp_lt_u32 s26, 2")
    a("s_mov_b32 s37, %d" % VB)
    a("s_cselect_b32 s36, %d, s37" % KB)
    a("s_and_b32 s37, s26, 1")
    a("s_lshl_b32 s37, s37, 6")
    a("s_add_u32 s36, s36, s37")
    a("v_add_u32 v11, s36, v11")
    a("s_waitcnt lgkmcnt(0)")

    def fix_write(accb, csb, st, addr, off):
        for p in range(2):
            a("v_pk_mul_f32 %s, %s, %s" % (vr(120 + 2 * p, 2), vr(csb + 2 * p, 2), vr(192 + 4 * st, 2)))
        for p in range(2):
            a("v_pk_fma_f32 %s, %s, %s, %s neg_lo:[0,0,1] neg_hi:[0,0,1]" % (vr(accb + 2 * p, 2), vr(accb + 2 * p, 2), vr(194 + 4 * st, 2), vr(120 + 2 * p, 2)))
        a("ds_write_b128 v%d, %s offset:%d" % (addr, vr(accb), off))

    for t in range(2):
        for jp in range(6):
            regbase = [QB, KB + 16 * 144, VB + 16 * 144][jp >> 1]
            fix_write(ACC + t * 24 + jp * 4, 88 + jp * 4, t, 10, regbase + t * 16 * 144 + (jp & 1) * 64)
    fix_write(80, 112, 2, 11, 0)
    a("s_waitcnt lgkmcnt(0)")
    a("s_barrier")
    a.stamp()
    a.label("L_k1_attn")
    a("v_bfe_u32 v4, v0, 1, 7")
    a("v_lshrrev_b32 v5, 8, v0")
    a("v_and_b32 v7, 1, v0")
    a("v_mul_u32_u24 v6, 144, v4")
    a("v_lshl_add_u32 v6, v5, 6, v6")
    a("v_lshl_add_u32 v6, v7, 5, v6")
    for i in range(2):
        a("ds_read_b128 %s, v6 offset:%d" % (vr(8 + 4 * i), QB + 16 * i))
    for w in range(8):
        for i in range(2):
            a("ds_read_b128 %s, v6 offset:%d" % (vr(64 + 8 * w + 4 * i), KB + 16 * 144 - 288 * w + 16 * i))
    a("v_mov_b32 v40, %s" % f32hex(0.25 * LOG2E))
    a("v_mov_b32 v41, %s" % f32hex(0.25 * LOG2E))
    a("s_waitcnt lgkmcnt(15)")
    a("s_waitcnt lgkmcnt(8)")
    for w in range(8):
        for i in range(2):
            a("ds_read_b128 %s, v6 offset:%d" % (vr(128 + 8 * w + 4 * i), VB + 16 * 144 - 288 * w + 16 * i))
        if w == 2:
            a("s_waitcnt lgkmcnt(6)")
    for i in range(4):
        a("v_pk_mul_f32 %s, %s, %s" % (vr(8 + 2 * i, 2), vr(8 + 2 * i, 2), vr(40, 2)))
    for w in range(8):
        kb = 64 + 8 * w
        a("v_pk_mul_f32 %s, %s, %s" % (vr(42 + 2 * w, 2), vr(8, 2), vr(kb, 2)))
    for i in range(1, 4):
        for w in range(8):
            kb = 64 + 8 * w
            a("v_pk_fma_f32 %s, %s, %s, %s" % (vr(42 + 2 * w, 2), vr(8 + 2 * i, 2), vr(kb + 2 * i, 2), vr(42 + 2 * w, 2)))
    for w in range(8):
        a("v_add_f32 v%d, v%d, v%d" % (24 + w, 42 + 2 * w, 43 + 2 * w))
    a("s_nop 1")
    for w in range(8):
        a("v_add_f32_dpp v%d, v%d, v%d quad_perm:[1,0,3,2] row_mask:0xf bank_mask:0xf" % (42 + w, 24 + w, 24 + w))
    a("v_add_u32 v32, s27, v4")
    a("v_mov_b32 v33, %s" % f32hex(-1e30))
    a("v_mov_b32 v24, v42")
    for w in range(1, 8):
        a("v_cmp_le_u32 vcc, %d, v32" % (2 * w))
        a("s_nop 1")
        a("v_cndmask_b32 v%d, v33, v%d, vcc" % (24 + w, 42 + w))
    a("v_max3_f32 v34, v24, v25, v26")
    a("v_max3_f32 v34, v34, v27, v28")
    a("v_max3_f32 v34, v34, v29, v30")
    a("v_max_f32 v34, v34, v31")
    for w in range(8):
        a("v_sub_f32 v%d, v%d, v34" % (24 + w, 24 + w))
    for w in range(8):
        a("v_exp_f32 v%d, v%d" % (24 + w, 24 + w))
    a("s_nop 0")
    a("v_add_f32 v35, v24, v25")
    for w in range(2, 8):
        a("v_add_f32 v35, v35, v%d" % (24 + w))
    a("v_rcp_f32 v35, v35")
    a("s_nop 0")
    for w in range(8):
        a("v_mul_f32 v%d, v%d, v35" % (44 + 2 * w, 24 + w))
    a("s_waitcnt lgkmcnt(0)")
    for i in range(4):
        a("v_pk_mul_f32 %s, %s, %s op_sel_hi:[0,1]" % (vr(8 + 2 * i, 2), vr(44, 2), vr(128 + 2 * i, 2)))
    for w in range(1, 8):
        for i in range(4):
            a("v_pk_fma_f32 %s, %s, %s, %s op_sel_hi:[0,1,1]" % (vr(8 + 2 * i, 2), vr(44 + 2 * w, 2), vr(128 + 8 * w + 2 * i, 2), vr(8 + 2 * i, 2)))
    for i in range(4):
        a("v_cvt_pk_bf16_f32 v%d, v%d, v%d" % (24 + i, 8 + 2 * i, 9 + 2 * i))
    a("v_lshlrev_b32 v32, 10, v32")
    a("v_lshl_add_u32 v32, v5, 5, v32")
    a("v_lshl_add_u32 v32, v7, 4, v32")
    a("v_add_u32 v32, s30, v32")
    a("buffer_store_dwordx4 %s, v32, s[20:23], 0 offen%s" % (vr(24), STF))
    a.stamp_dump()
    a.label(done)
    a("s_endpgm")
    return name, 240, 240, 131072 + 512


def gen_k24(a, which):
    if which == 2:
        name = "k2_wo_kernel"
        K = 512
    else:
        name = "k4_w2_kernel"
        K = 1792
    kernel_head(a, name)
    done = "L_%s_done" % name
    common_prologue(a, 256, done)
    map32x8(a)
    if which == 2:
        srd(a, 12, P_WS, 2048 * 512 * 2, WS_O)
        srd(a, 16, P_WO, 512 * 512 * 2)
        srd(a, 20, P_X, 2048 * 512 * 2)
        srd(a, 36, P_WS, 2048 * 512 * 2, WS_H)
    else:
        srd(a, 12, P_WS, 2048 * 1792 * 2, WS_HID)
        srd(a, 16, P_W2, 1792 * 512 * 2)
        srd(a, 20, P_WS, 2048 * 512 * 2, WS_H)
        srd(a, 36, P_OUT, 2048 * 512 * 2)
        srd(a, 60, P_B2, 512 * 2)
    P = Pipe(a, K, 128, 4 if which == 2 else 3, 64, K * 2, 128, 1024, 4, 4, [9, 9, 9, 9], 32 * 1024)
    a("s_lshr_b32 s27, s26, 1")
    a("s_and_b32 s28, s26, 1")
    a("s_lshl_b32 s29, s24, 6")
    P.a_pattern(8, 29)
    a("v_lshrrev_b32 v5, 3, v1")
    a("v_bfe_u32 v6, v1, 1, 2")
    a("v_bfe_u32 v7, v1, 4, 1")
    a("s_lshl_b32 s3, s28, 1")
    a("v_or_b32 v7, s3, v7")
    a("v_xor_b32 v6, v6, v7")
    a("v_and_b32 v7, 1, v1")
    a("v_lshlrev_b32 v7, 4, v7")
    a("v_lshl_add_u32 v7, v6, 5, v7")
    a("s_lshl_b32 s3, s26, 3")
    a("v_add_u32 v5, s3, v5")
    a("v_lshl_add_u32 v7, v5, 10, v7")
    a("s_lshl_b32 s3, s25, 7")
    a("v_add_u32 v9, s3, v7")
    P.role_branch(name, 8, 2)
    a("s_lshl_b32 s30, s26, 4")
    a("s_add_u32 s30, s30, s29")
    a("v_lshrrev_b32 v5, 3, v1")
    a("v_add_u32 v5, s30, v5")
    a("v_and_b32 v6, 7, v1")
    a("v_lshlrev_b32 v6, 4, v6")
    a("s_lshl_b32 s30, s25, 7")
    a("v_add_u32 v12, s30, v6")
    a("v_lshl_add_u32 v10, v5, 10, v12")
    a("v_add_u32 v11, 0x2000, v10")
    for p in range(2):
        a("buffer_load_dwordx4 %s, v%d, s[20:23], 0 offen" % (vr(96 + p * 4), 10 + p))
    if which == 4:
        a("buffer_load_dwordx4 %s, v12, s[60:63], 0 offen" % vr(104))
    P.la_pattern(13)
    a("s_mul_i32 s3, s27, %d" % (32 * 256))
    for ks in range(4):
        a("v_add_u32 v%d, s3, v%d" % (13 + ks, 13 + ks))
    a("v_lshrrev_b32 v5, 2, v2")
    a("v_and_b32 v6, 3, v2")
    a("v_lshl_add_u32 v7, v3, 3, v5")
    a("v_lshlrev_b32 v7, 7, v7")
    a("v_lshl_add_u32 v7, v6, 3, v7")
    a("v_add_u32 v7, %d, v7" % P.BOFF)
    a("v_lshrrev_b32 v5, 1, v5")
    a("v_and_b32 v6, 1, v3")
    a("v_lshl_add_u32 v5, v6, 1, v5")
    a("s_lshl_b32 s3, s28, 1")
    a("v_xor_b32 v6, s3, v5")
    a("v_lshl_add_u32 v17, v6, 5, v7")
    a("v_xor_b32 v6, 1, v6")
    a("v_lshl_add_u32 v18, v6, 5, v7")
    addr_regs = [(20 + i, 13 + i) for i in range(6)]
    ACC = 32
    WS_ = [48, 56]
    AS_ = [64, 72]
    for i in range(16):
        a("v_mov_b32 v%d, 0" % (ACC + i))

    def reads(ks, s):
        L = []
        for t in range(2):
            L.append("ds_read_b128 %s, v%d offset:%d" % (vr(AS_[s] + 4 * t), 20 + ks, t * 16 * 256))
        for j in range(2):
            for h in range(2):
                L.append("ds_read_b64_tr_b16 %s, v%d offset:%d" % (vr(WS_[s] + j * 4 + h * 2, 2), 24 + j, ks * 4096 + h * 512))
        return L

    def compute(ks, s):
        mf = []
        for t in range(2):
            for j in range(2):
                mf.append(mfma(ACC + (t * 2 + j) * 4, WS_[s] + j * 4, AS_[s] + 4 * t))
        return mf, [], []

    P.run(name, 8, addr_regs, reads, compute)
    a("s_waitcnt vmcnt(0)")
    a("s_lshl_b32 s3, s27, 5")
    a("v_add_u32 v4, s3, v2")
    a("v_mul_u32_u24 v4, 272, v4")
    a("v_lshl_add_u32 v4, v3, 4, v4")
    a("s_lshl_b32 s3, s28, 7")
    a("v_add_u32 v4, s3, v4")
    a("s_barrier")
    for t in range(2):
        for j in range(2):
            a("ds_write_b128 v4, %s offset:%d" % (vr(ACC + (t * 2 + j) * 4), t * 16 * 272 + j * 64))
    a("v_lshrrev_b32 v5, 3, v1")
    a("s_lshl_b32 s3, s26, 4")
    a("v_add_u32 v5, s3, v5")
    a("v_mul_u32_u24 v5, 272, v5")
    a("v_and_b32 v6, 7, v1")
    a("v_lshl_add_u32 v5, v6, 5, v5")
    a("s_waitcnt lgkmcnt(0)")
    a("s_barrier")
    for p in range(2):
        a("ds_read_b128 %s, v5 offset:%d" % (vr(48 + p * 8), p * 8 * 272))
        a("ds_read_b128 %s, v5 offset:%d" % (vr(52 + p * 8), p * 8 * 272 + 16))
    if which == 4:
        for i in range(4):
            a("v_lshlrev_b32 v%d, 16, v%d" % (72 + 2 * i, 104 + i))
            a("v_and_b32 v%d, 0xffff0000, v%d" % (73 + 2 * i, 104 + i))
    a("s_waitcnt lgkmcnt(0)")
    for p in range(2):
        for i in range(4):
            a("v_lshlrev_b32 v%d, 16, v%d" % (64 + 2 * i, 96 + p * 4 + i))
            a("v_and_b32 v%d, 0xffff0000, v%d" % (65 + 2 * i, 96 + p * 4 + i))
        for i in range(4):
            a("v_pk_add_f32 %s, %s, %s" % (vr(48 + p * 8 + 2 * i, 2), vr(48 + p * 8 + 2 * i, 2), vr(64 + 2 * i, 2)))
        if which == 4:
            for i in range(4):
                a("v_pk_add_f32 %s, %s, %s" % (vr(48 + p * 8 + 2 * i, 2), vr(48 + p * 8 + 2 * i, 2), vr(72 + 2 * i, 2)))
        for i in range(4):
            a("v_cvt_pk_bf16_f32 v%d, v%d, v%d" % (96 + p * 4 + i, 48 + p * 8 + 2 * i, 49 + p * 8 + 2 * i))
        a("buffer_store_dwordx4 %s, v%d, s[36:39], 0 offen%s" % (vr(96 + p * 4), 10 + p, STF))
    a.stamp_dump()
    a.label(done)
    a("s_endpgm")
    return name, 112, 112, P.BUFSZ * P.NBUF


def gen_k3(a):
    name = "k3_w1_kernel"
    kernel_head(a, name)
    done = "L_k3_done"
    common_prologue(a, 256, done)
    map16(a)
    srd(a, 12, P_WS, 2048 * 512 * 2, WS_H)
    srd(a, 16, P_W1, 512 * 1792 * 2)
    srd(a, 20, P_WS, 2048 * 1792 * 2, WS_HID)
    srd(a, 36, P_B1, 1792 * 2)
    P = Pipe(a, 512, 64, 3, 128, 1024, 224, 3584, 4, 4, [9, 10, 11, 12], 0)
    a("s_lshl_b32 s27, s24, 7")
    a("s_mul_i32 s30, s25, 224")
    P.a_pattern(8, 27)
    for t in range(4):
        d = 9 + t
        a("s_lshl_b32 s3, s26, 6")
        a("s_add_u32 s3, s3, %d" % (t * 256))
        a("v_add_u32 v13, s3, v1")
        a("v_mul_u32_u24 v14, 2341, v13")
        a("v_lshrrev_b32 v14, 15, v14")
        a("v_mul_u32_u24 v15, 14, v14")
        a("v_sub_u32 v15, v13, v15")
        a("v_lshrrev_b32 v16, 1, v15")
        a("v_and_b32 v15, 1, v15")
        a("v_bfe_u32 v13, v14, 3, 1")
        a("v_lshlrev_b32 v13, 2, v13")
        a("v_sub_u32 v16, v16, v13")
        a("v_add_u32 v16, 7, v16")
        mod_wrap(a, 16, 7, 13)
        a("v_lshlrev_b32 v16, 5, v16")
        a("v_lshl_add_u32 v16, v15, 4, v16")
        a("v_mul_u32_u24 v14, 3584, v14")
        a("v_add3_u32 v%d, v14, v16, s30" % d)
    def k3_join():
        a("v_lshlrev_b32 v5, 3, v3")
        a("v_add_u32 v5, s30, v5")
        for jp in range(7):
            a("buffer_load_dwordx2 %s, v5, s[36:39], 0 offen offset:%d" % (vr(200 + 2 * jp, 2), jp * 32))
        a("s_lshl_b32 s28, s26, 5")
        a("s_add_u32 s28, s28, s27")
        a("s_lshl_b32 s3, s26, 13")
        a("s_add_u32 s3, s3, %d" % 32768)
        a("v_lshlrev_b32 v9, 4, v1")
        a("v_add_u32 v9, s3, v9")
        a("s_barrier")
        for q in range(7):
            a("ds_read_b128 %s, v9 offset:%d" % (vr(32 + 4 * q), q * 1024))
        a("ds_read_b128 %s, v9 offset:%d" % (vr(216), 7 * 1024))
        a("s_waitcnt vmcnt(0) lgkmcnt(0)")
    P.role_branch("k3", 8, 0, k3_join, "L_k3_gelu")
    a("v_lshlrev_b32 v5, 3, v3")
    a("v_add_u32 v5, s30, v5")
    for jp in range(7):
        a("buffer_load_dwordx2 %s, v5, s[36:39], 0 offen offset:%d" % (vr(200 + 2 * jp, 2), jp * 32))
    a("s_lshl_b32 s28, s26, 5")
    a("s_add_u32 s28, s28, s27")
    P.la_pattern(13)
    a("s_mul_i32 s3, s26, %d" % (32 * 128))
    a("v_add_u32 v13, s3, v13")
    a("v_add_u32 v14, s3, v14")
    a("v_lshrrev_b32 v5, 2, v2")
    a("v_and_b32 v6, 3, v2")
    a("v_lshl_add_u32 v5, v3, 3, v5")
    a("v_mul_u32_u24 v5, 224, v5")
    a("v_lshl_add_u32 v5, v6, 3, v5")
    a("v_add_u32 v5, %d, v5" % P.BOFF)
    a("v_and_b32 v6, 1, v3")
    a("v_lshl_add_u32 v15, v6, 7, v5")
    a("v_mul_u32_u24 v7, 96, v6")
    a("v_sub_u32 v16, v5, v7")
    a("v_lshlrev_b32 v6, 2, v6")
    a("v_add_u32 v7, s26, v6")
    mod_wrap(a, 7, 7, 17)
    a("v_lshl_add_u32 v17, v7, 5, v5")
    a("s_add_u32 s3, s26, 4")
    a("s_min_u32 s3, s3, 6")
    a("v_add_u32 v7, s3, v6")
    mod_wrap(a, 7, 7, 18)
    a("v_lshl_add_u32 v18, v7, 5, v5")
    addr_regs = [(20 + i, 13 + i) for i in range(6)]
    ACC = 32
    WS_ = [96, 132]
    AS_ = [168, 176]
    ST = 184
    SQ = 228
    for i in range(16):
        a("v_mov_b32 v%d, 0" % (SQ + i))
    a("v_mov_b32 v26, 0x3f803f80")
    for i in range(4):
        a("v_mov_b32 v%d, 0x3f803f80" % (188 + i))
    for i in range(64):
        a("v_mov_b32 v%d, 0" % (ACC + i))
    for i in range(4):
        a("v_mov_b32 v%d, 0" % (ST + i))

    def reads(ks, s):
        L = []
        for t in range(2):
            L.append("ds_read_b128 %s, v%d offset:%d" % (vr(AS_[s] + 4 * t), 20 + ks, t * 16 * 128))
        for jp in range(7):
            for h in range(2):
                L.append("ds_read_b64_tr_b16 %s, v%d offset:%d" % (vr(WS_[s] + jp * 4 + h * 2, 2), 22 if jp < 3 else 23, ks * 7168 + h * 896 + jp * 32))
        for e in range(2):
            for h in range(2):
                L.append("ds_read_b64_tr_b16 %s, v%d offset:%d" % (vr(WS_[s] + 28 + e * 4 + h * 2, 2), 24 + e, ks * 7168 + h * 896))
        return L

    def compute(ks, s):
        mf = []
        for jp in range(7):
            for t in range(2):
                mf.append(mfma(ACC + t * 28 + jp * 4, WS_[s] + jp * 4, AS_[s] + 4 * t))
        mf.append(mfma(88, WS_[s] + 28, 188))
        mf.append(mfma(92, WS_[s] + 32, 188))
        for t in range(2):
            mf.append(mfma(SQ + 8 * t, 188, AS_[s] + 4 * t))
            mf.append(mfma(SQ + 8 * t + 4, AS_[s] + 4 * t, AS_[s] + 4 * t))
        return mf, [], []

    P.run("k3", 8, addr_regs, reads, compute)
    a("s_waitcnt vmcnt(0)")
    stats_extract(a, SQ, ST, 2)
    a("v_mov_b32 v4, %s" % f32hex(1.0 / 512))
    a("v_mov_b32 v5, %s" % f32hex(1e-5))
    for t in range(2):
        s_, q_ = ST + 2 * t, ST + 2 * t + 1
        a("v_mul_f32 v%d, v%d, v4" % (s_, s_))
        a("v_mul_f32 v%d, v%d, v4" % (q_, q_))
        a("v_fma_f32 v%d, -v%d, v%d, v%d" % (q_, s_, s_, q_))
        a("v_max_f32 v%d, 0, v%d" % (q_, q_))
        a("v_add_f32 v6, v%d, v5" % q_)
        a("v_rcp_f32 v7, v6")
        a("v_rsq_f32 v6, v6")
        a("s_nop 0")
        a("v_fma_f32 v7, v%d, v7, v5" % q_)
        a("v_rsq_f32 v7, v7")
        a("s_nop 0")
        a("v_mul_f32 v%d, v6, v7" % (218 + 4 * t))
        a("v_mul_f32 v%d, v6, v7" % (219 + 4 * t))
        a("v_mul_f32 v%d, v%d, v%d" % (216 + 4 * t, s_, 218 + 4 * t))
        a("v_mul_f32 v%d, v%d, v%d" % (217 + 4 * t, s_, 218 + 4 * t))
    a.stamp()
    CS = 131072
    XS = 32768
    a("v_lshlrev_b32 v6, 4, v3")
    a("v_add_u32 v6, %d, v6" % CS)
    a("s_lshl_b32 s3, s26, 6")
    a("v_add_u32 v7, s3, v6")
    a("s_add_u32 s3, s26, 4")
    a("s_min_u32 s3, s3, 6")
    a("s_lshl_b32 s3, s3, 6")
    a("v_add_u32 v8, s3, v6")
    a("s_lshl_b32 s3, s26, 13")
    a("s_add_u32 s3, s3, %d" % XS)
    a("v_lshlrev_b32 v9, 4, v1")
    a("v_add_u32 v9, s3, v9")
    for q in range(7):
        a("ds_write_b128 v9, %s offset:%d" % (vr(ACC + 28 + 4 * q), q * 1024))
    a("ds_write_b128 v9, %s offset:%d" % (vr(220), 7 * 1024))
    a("v_cmp_eq_u32 vcc, 0, v2")
    a("s_and_saveexec_b64 s[34:35], vcc")
    a("ds_write_b128 v7, %s" % vr(88))
    a("ds_write_b128 v8, %s" % vr(92))
    a("s_mov_b64 exec, s[34:35]")
    a("s_waitcnt lgkmcnt(0)")
    a("s_barrier")
    a.label("L_k3_gelu")
    a("v_lshlrev_b32 v6, 4, v3")
    a("v_add_u32 v6, %d, v6" % CS)
    for jp in range(7):
        a("ds_read_b128 %s, v6 offset:%d" % (vr(96 + jp * 4), jp * 64))
    a("s_lshl_b32 s31, s26, 1")
    a("s_add_u32 s31, s31, s51")
    a("s_mul_i32 s31, s31, 3840")
    a("s_lshl_b32 s3, s51, 4")
    a("s_add_u32 s28, s28, s3")
    a("s_mov_b32 s32, 3584")
    a("v_mul_u32_u24 v30, 240, v2")
    a("v_lshl_add_u32 v30, v3, 3, v30")
    a("v_add_u32 v30, s31, v30")
    C0 = 0.7978845608028654
    c1 = f32hex(-2.0 * LOG2E * C0)
    c2 = f32hex(-2.0 * LOG2E * C0 * 0.044715)
    a("v_mov_b32 v224, %s" % c1)
    a("v_mov_b32 v225, %s" % c1)
    a("v_mov_b32 v226, %s" % c2)
    a("v_mov_b32 v227, %s" % c2)
    for jp in range(7):
        a("v_lshlrev_b32 v%d, 16, v%d" % (124 + 4 * jp, 200 + 2 * jp))
        a("v_and_b32 v%d, 0xffff0000, v%d" % (125 + 4 * jp, 200 + 2 * jp))
        a("v_lshlrev_b32 v%d, 16, v%d" % (126 + 4 * jp, 201 + 2 * jp))
        a("v_and_b32 v%d, 0xffff0000, v%d" % (127 + 4 * jp, 201 + 2 * jp))
    a("s_waitcnt lgkmcnt(0)")
    a.stamp()
    TB = 152
    prs = [(jp, p) for jp in range(7) for p in range(2)]

    def A_(jp, p):
        return vr(ACC + jp * 4 + 2 * p, 2)

    def T_(jp, p):
        return vr(TB + jp * 4 + 2 * p, 2)

    for (jp, p) in prs:
        a("v_pk_fma_f32 %s, %s, %s, %s neg_lo:[1,0,0] neg_hi:[1,0,0]" % (T_(jp, p), vr(216, 2), vr(96 + jp * 4 + 2 * p, 2), vr(124 + jp * 4 + 2 * p, 2)))
    for (jp, p) in prs:
        a("v_pk_fma_f32 %s, %s, %s, %s" % (A_(jp, p), A_(jp, p), vr(218, 2), T_(jp, p)))
    for (jp, p) in prs:
        a("v_pk_mul_f32 %s, %s, %s" % (T_(jp, p), A_(jp, p), A_(jp, p)))
    for (jp, p) in prs:
        a("v_pk_fma_f32 %s, %s, %s, %s" % (T_(jp, p), T_(jp, p), vr(226, 2), vr(224, 2)))
    for (jp, p) in prs:
        a("v_pk_mul_f32 %s, %s, %s" % (T_(jp, p), T_(jp, p), A_(jp, p)))
    for i in range(28):
        a("v_exp_f32 v%d, v%d" % (TB + i, TB + i))
    for (jp, p) in prs:
        a("v_pk_add_f32 %s, %s, 1.0 op_sel_hi:[1,0]" % (T_(jp, p), T_(jp, p)))
    for i in range(28):
        a("v_rcp_f32 v%d, v%d" % (TB + i, TB + i))
    for (jp, p) in prs:
        a("v_pk_mul_f32 %s, %s, %s" % (A_(jp, p), A_(jp, p), T_(jp, p)))
    for jp in range(7):
        accb = ACC + jp * 4
        T = TB + jp * 4
        a("v_cvt_pk_bf16_f32 v%d, v%d, v%d" % (T, accb, accb + 1))
        a("v_cvt_pk_bf16_f32 v%d, v%d, v%d" % (T + 1, accb + 2, accb + 3))
    for jp in range(7):
        a("ds_write_b64 v30, %s offset:%d" % (vr(TB + jp * 4, 2), jp * 32))
    a.stamp()
    for p in range(4):
        a("v_add_u32 v4, %d, v1" % (p * 64))
        a("v_mul_u32_u24 v5, 2341, v4")
        a("v_lshrrev_b32 v5, 15, v5")
        a("v_mul_u32_u24 v6, 14, v5")
        a("v_sub_u32 v6, v4, v6")
        a("v_lshlrev_b32 v6, 4, v6")
        a("v_mul_u32_u24 v7, 240, v5")
        a("v_add3_u32 v%d, v7, v6, s31" % (32 + p))
        a("v_add_u32 v5, s28, v5")
        a("v_mul_lo_u32 v5, v5, s32")
        a("v_add3_u32 v%d, v5, v6, s30" % (40 + p))
    a("s_waitcnt lgkmcnt(0)")
    for p in range(4):
        a("ds_read_b128 %s, v%d" % (vr(96 + 4 * p), 32 + p))
    for p in range(3):
        a("s_waitcnt lgkmcnt(%d)" % (3 - p))
        a("buffer_store_dwordx4 %s, v%d, s[20:23], 0 offen%s" % (vr(96 + 4 * p), 40 + p, STF))
    a("v_cmp_gt_u32 vcc, 32, v1")
    a("s_and_saveexec_b64 s[34:35], vcc")
    a("s_waitcnt lgkmcnt(0)")
    a("buffer_store_dwordx4 %s, v43, s[20:23], 0 offen%s" % (vr(108), STF))
    a("s_mov_b64 exec, s[34:35]")
    a.stamp()
    a.stamp_dump()
    a.label(done)
    a("s_endpgm")
    return name, 244, 244, 131072 + 512


def main():
    global STAMP, OUT, EXP, STF
    if len(sys.argv) > 1 and sys.argv[1] == "stamp":
        STAMP = True
        OUT = "stamp.s"
        if len(sys.argv) > 2:
            EXP = sys.argv[2]
            OUT = "stamp_%s.s" % EXP
            if "sc1" in EXP:
                STF = " sc1"
            if "nt" in EXP:
                STF = " nt"
            if "both" in EXP:
                STF = " sc0 sc1"
    a = Asm()
    ks = [gen_k1(a), gen_k24(a, 2), gen_k3(a), gen_k24(a, 4)]
    head = open("cdna_kernels/%s.s.ref" % NAME).read().split("; Override launch")[0]
    out = head
    for (name, nv, acc, lds) in ks:
        out += "; @launch kernel=%s grid=(256,1,1) block=(512,1,1) lds=%d\n" % (name, lds)
    out += '.amdgcn_target "amdgcn-amd-amdhsa--gfx950"\n.text\n'
    out += a.text()
    out += "L_code_end:\n"
    out += '.section .rodata,"a"\n'
    for (name, nv, acc, lds) in ks:
        out += ".p2align 6\n" + kernel_desc(name, nv, acc)
    open(OUT, "w").write(out)
    print("wrote", OUT, len(out))


if __name__ == "__main__":
    assert all((sl * 2731) >> 15 == sl // 12 for sl in range(768))
    assert all((sl * 2341) >> 15 == sl // 14 for sl in range(1024))
    main()
```
